```python
import torch

def _softmax(x, axis=-1):
    return torch.softmax(x, dim=axis)
def _gelu(x):
    return torch.nn.functional.gelu(x, approximate="tanh")
def _silu(x):
    return torch.nn.functional.silu(x)
def _sigmoid(x):
    return torch.sigmoid(x)
def _layernorm(x, axis=-1, eps=1e-5):
    m = x.mean(dim=axis, keepdim=True)
    v = x.var(dim=axis, keepdim=True, unbiased=False)
    return (x - m) / torch.sqrt(v + eps)
def _scatter_add(tgt, idx, src, axis=0):
    return tgt.clone().index_add_(axis, idx, src)
def _segment_sum(src, seg, n):
    out = torch.zeros((n,) + src.shape[1:], dtype=src.dtype)
    return out.index_add_(0, seg, src)
def _pad(x, pw):
    flat = tuple(v for pair in reversed(pw) for v in pair)
    return torch.nn.functional.pad(x, flat)

kernel_name = 'parallel_sum__linear_attn_block__dense_activation_squared_relu__prompt'

def setup_inputs():

    _w = (lambda a: (lambda t: t.to(torch.bfloat16) if t.is_floating_point() else t)(torch.as_tensor(a)))
    def _A_setup():
        B, S, D = 1, 2048, 512
        return {
            "x": _w((lambda *s: torch.randn(*s, dtype=torch.bfloat16) * 0.05)(B, S, D)),
            "wqkv": _w((lambda *s: torch.randn(*s, dtype=torch.bfloat16) * 0.4)(D, 3 * D)),
            "wo": _w((lambda *s: torch.randn(*s, dtype=torch.bfloat16) * 0.2)(D, D)),
        }
    _A_in = _A_setup()

    def _B_setup():
        B, S, D, F = 1, 2048, 512, 1376
        return {
            "x": _w((lambda *s: torch.randn(*s, dtype=torch.bfloat16) * 0.05)(B, S, D)),
            "w1": _w((lambda *s: torch.randn(*s, dtype=torch.bfloat16) * 0.05)(D, F)),
            "b1": _w((lambda *s: torch.randn(*s, dtype=torch.bfloat16) * 0.2)(F)),
            "w2": _w((lambda *s: torch.randn(*s, dtype=torch.bfloat16) * 0.05)(F, D)),
            "b2": _w((lambda *s: torch.randn(*s, dtype=torch.bfloat16) * 0.8)(D)),
        }
    _B_in = _B_setup()

    return {
        "A_x": _A_in["x"],
        "A_wqkv": _A_in["wqkv"],
        "A_wo": _A_in["wo"],
        "B_x": _B_in["x"],
        "B_w1": _B_in["w1"],
        "B_b1": _B_in["b1"],
        "B_w2": _B_in["w2"],
        "B_b2": _B_in["b2"],
    }

def reference(A_x, A_wqkv, A_wo, B_x, B_w1, B_b1, B_w2, B_b2):
    def _A_ref(x, wqkv, wo):
        B, S, D = x.shape
        H = 32; Dh = D // H
        qkv = (lambda x, *d: x.permute(*d))((x @ wqkv).reshape(B, S, 3, H, Dh), 2, 0, 3, 1, 4)
        q, k, v = qkv[0], qkv[1], qkv[2]
        phi = lambda t: torch.where(t > 0, t + 1, torch.exp(t)) + 1e-6
        pq, pk = phi(q), phi(k)
        kv = torch.einsum("bhsd,bhse->bhde", pk, v)
        z = torch.einsum("bhsd->bhd", pk)
        num = torch.einsum("bhqd,bhde->bhqe", pq, kv)
        den = torch.einsum("bhqd,bhd->bhq", pq, z)[..., None] + 1e-6
        o = num / den
        return (lambda x, *d: x.permute(*d))(o, 0, 2, 1, 3).reshape(B, S, D) @ wo

    def _B_ref(x, w1, b1, w2, b2):
        h = torch.einsum("bsd,df->bsf", x, w1) + b1
        zero = torch.zeros_like(h)
        r = torch.where(h > zero, h, zero)
        h = r * r
        out = torch.einsum("bsf,fd->bsd", h, w2) + b2
        return out

    x = A_x
    xn = _layernorm(x, axis=-1)
    return x + _A_ref(xn, A_wqkv, A_wo) + _B_ref(xn, B_w1, B_b1, B_w2, B_b2)
```

```python
import re


class R:
    def __init__(self, kind, idx, n=1):
        self.kind, self.idx, self.n = kind, idx, n

    def __getitem__(self, k):
        if isinstance(k, slice):
            a = k.start or 0
            b = self.n if k.stop is None else k.stop
            assert 0 <= a < b <= self.n, (a, b, self.n)
            return R(self.kind, self.idx + a, b - a)
        assert 0 <= k < self.n, (k, self.n)
        return R(self.kind, self.idx + k, 1)

    def __str__(self):
        if self.n == 1:
            return f"{self.kind}{self.idx}"
        return f"{self.kind}[{self.idx}:{self.idx + self.n - 1}]"

    __repr__ = __str__

    def __format__(self, spec):
        return str(self)


class Alloc:
    def __init__(self, kind, start, end):
        self.kind, self.cur, self.end = kind, start, end
        self.high = start

    def __call__(self, n=1, align=None):
        if align is None:
            align = 1 if n == 1 else (2 if (n == 2 or self.kind == 'v') else 4)
        self.cur = (self.cur + align - 1) // align * align
        r = R(self.kind, self.cur, n)
        self.cur += n
        assert self.cur <= self.end, f"out of {self.kind} regs ({self.cur} > {self.end})"
        self.high = max(self.high, self.cur)
        return r

    def mark(self):
        return self.cur

    def reset(self, m):
        self.cur = m


_reg_re = re.compile(r"^(-|\|)?(?:abs\()?([vsa])(?:(\d+)|\[(\d+):(\d+)\])\)?\|?$")
TRANS = ("v_exp_f32", "v_log_f32", "v_rcp_f32", "v_rsq_f32", "v_sqrt_f32", "v_sin_f32", "v_cos_f32")


def regs_of(op):
    op = op.strip()
    if op in ("vcc", "vcc_lo", "vcc_hi"):
        return {("s", "vcc")}
    if op in ("exec", "exec_lo", "exec_hi"):
        return {("s", "exec")}
    if op == "m0":
        return {("s", "m0")}
    m = _reg_re.match(op)
    if not m:
        return set()
    k = m.group(2)
    if m.group(3) is not None:
        return {(k, int(m.group(3)))}
    return {(k, i) for i in range(int(m.group(4)), int(m.group(5)) + 1)}


class Ins:
    def __init__(self, text):
        self.text = text
        t = text.split(";")[0].strip()
        self.label = None
        self.op = None
        if t.endswith(":"):
            self.label = t[:-1]
            return
        if not t or t.startswith("."):
            return
        parts = t.split(None, 1)
        self.op = op = parts[0]
        rest = parts[1] if len(parts) > 1 else ""
        ops, depth, cur = [], 0, ""
        for ch in rest:
            if ch in "[(":
                depth += 1
            if ch in "])":
                depth -= 1
            if ch == "," and depth == 0:
                ops.append(cur.strip())
                cur = ""
            else:
                cur += ch
        if cur.strip():
            ops.append(cur.strip())
        mods = ""
        if ops:
            last = ops[-1].split(None, 1)
            ops[-1] = last[0]
            mods = last[1] if len(last) > 1 else ""
        self.ops, self.mods = ops, mods
        self.mfma = op.startswith("v_mfma")
        self.valu = op.startswith("v_") and not self.mfma
        self.trans = any(op.startswith(x) for x in TRANS)
        self.dot = op.startswith("v_dot")
        self.dpp = "_dpp" in op
        self.perml = op.startswith("v_permlane")
        self.rdlane = op.startswith("v_readfirstlane") or op.startswith("v_readlane")
        self.vmem = op.startswith("buffer_") or op.startswith("global_")
        self.ds = op.startswith("ds_")
        self.salu = op.startswith("s_")
        self.ldsdma = self.vmem and (" lds" in " " + mods or "load_lds" in op)
        self.W, self.Rd = set(), set()
        self.A = self.B = self.C = set()
        self.sdata = set()
        rs = [regs_of(o) for o in ops]
        if self.mfma:
            self.W = rs[0]
            self.A, self.B, self.C = rs[1], rs[2], rs[3]
            self.Rd = rs[1] | rs[2] | rs[3]
            self.passes = 8 if "32x32" in op else 4
        elif self.valu:
            if op.startswith("v_nop"):
                pass
            elif self.perml:
                self.W = rs[0] | rs[1]
                self.Rd = rs[0] | rs[1]
            elif op.startswith(("v_add_co", "v_sub_co", "v_addc_co", "v_subb_co", "v_mad_u64")):
                self.W = rs[0] | rs[1]
                self.Rd = set().union(*rs[2:])
            else:
                self.W = rs[0]
                self.Rd = set().union(*rs[1:]) if len(rs) > 1 else set()
                if op.startswith(("v_fmac", "v_dot2c", "v_writelane")) or self.dpp:
                    self.Rd |= rs[0]
                if self.dot:
                    self.A = rs[1] | rs[2]
        elif self.vmem:
            if op.startswith(("buffer_wbl2", "buffer_inv")):
                pass
            elif self.ldsdma:
                self.Rd = set().union(*rs) | {("s", "m0")}
            elif "_load" in op:
                self.W = rs[0]
                self.Rd = set().union(*rs[1:])
            elif op.startswith("buffer_"):
                self.Rd = set().union(*rs)
                if "x4" in op or "x3" in op:
                    self.sdata = rs[0]
                if "atomic" in op and "sc0" in mods:
                    self.W = rs[0]
            else:
                self.Rd = set().union(*rs)
                if "x4" in op or "x3" in op:
                    self.sdata = rs[1]
        elif self.ds:
            if "read" in op or "permute" in op or "swizzle" in op:
                self.W = rs[0]
                self.Rd = set().union(*rs[1:])
            else:
                self.Rd = set().union(*rs)
        elif self.salu:
            if op.startswith(("s_cmp", "s_waitcnt", "s_barrier", "s_nop", "s_cbranch", "s_branch", "s_sleep",
                              "s_setprio", "s_endpgm", "s_bitcmp")):
                self.Rd = set().union(*rs) if rs else set()
            else:
                self.W = rs[0] if rs else set()
                self.Rd = set().union(*rs[1:]) if len(rs) > 1 else set()

    def states(self):
        if self.op is None:
            return 0
        if self.op == "s_nop":
            return int(self.ops[0], 0) + 1
        return 1


def vonly(s):
    return {x for x in s if x[0] in "va"}


def sonly(s):
    return {x for x in s if x[0] == "s"}


def need(p, c):
    n = 0
    if p.valu:
        wv, ws = vonly(p.W), sonly(p.W)
        if c.mfma and wv & c.Rd:
            n = max(n, 3 if p.dot else 2)
        if c.valu:
            if p.trans and wv & c.Rd:
                n = max(n, 1)
            if (c.perml or c.dpp) and wv & c.Rd:
                n = max(n, 2)
            if c.rdlane and wv & c.Rd:
                n = max(n, 1)
            if ws & c.Rd:
                n = max(n, 4 if c.op.startswith(("v_readlane", "v_writelane")) else 2)
            if p.dot:
                if c.op == p.op:
                    if wv & c.A:
                        n = max(n, 3)
                elif wv & (c.Rd | c.W):
                    n = max(n, 3)
        if p.dot and (c.vmem or c.ds) and wv & c.Rd:
            n = max(n, 3)
        if c.vmem and ws & c.Rd:
            n = max(n, 5)
        if c.salu and ws & (c.Rd):
            n = max(n, 1)
    if p.mfma:
        big = p.passes == 8
        if c.mfma:
            if p.W & (c.A | c.B):
                n = max(n, 12 if big else 8)
            if p.W & c.C and not (p.W == c.C and p.op == c.op):
                n = max(n, 10 if big else 6)
            if p.W & c.W and not (p.W == c.C and p.op == c.op):
                n = max(n, 10 if big else 6)
        elif (c.valu or c.vmem or c.ds) and p.W & (c.Rd | c.W):
            n = max(n, 12 if big else 8)
        if c.valu and p.C & c.W:
            n = max(n, 7 if big else 3)
    if p.salu and ("s", "m0") in p.W and c.ldsdma:
        n = max(n, 1)
    if p.vmem and p.sdata and p.sdata & c.W:
        n = max(n, 2)
    return n


class Asm:
    def __init__(self):
        self.lines = []
        self._uid = 0

    def __call__(self, text):
        for ln in text.split("\n"):
            ln = ln.strip()
            if ln:
                self.lines.append(ln)

    def label(self, name):
        self.lines.append(name + ":")

    def uid(self, base):
        self._uid += 1
        return f"{base}_{self._uid}"

    def finish(self, verbose=False):
        ins = [Ins(l) for l in self.lines]
        out = []
        labels = {}
        changed = True
        total = 0
        while changed:
            changed = False
            labels = {x.label: i for i, x in enumerate(ins) if x.label}
            srcs = {}
            for i, x in enumerate(ins):
                if x.op and x.op.startswith(("s_cbranch", "s_branch")):
                    srcs.setdefault(labels[x.ops[0]], []).append(i)
            for j, c in enumerate(ins):
                if c.op is None or c.op == "s_nop":
                    continue
                worst = 0
                stack = [(j, 0)]
                seen = set()
                while stack:
                    i, dist = stack.pop()
                    preds = []
                    if i > 0:
                        p = ins[i - 1]
                        if not (p.op in ("s_branch", "s_endpgm")):
                            preds.append(i - 1)
                    if ins[i].label:
                        preds += srcs.get(i, [])
                    for k in preds:
                        p = ins[k]
                        if (k, dist) in seen:
                            continue
                        seen.add((k, dist))
                        if p.op is not None:
                            nd = need(p, c)
                            if nd - dist > worst:
                                worst = nd - dist
                        d2 = dist + p.states()
                        if d2 < 12:
                            stack.append((k, d2))
                if worst > 0:
                    ins.insert(j, Ins(f"s_nop {worst - 1}"))
                    total += 1
                    changed = True
                    break
        if verbose:
            print("inserted nops:", total)
        for x in ins:
            out.append(x.text if (x.label or x.text.startswith(".")) else "    " + x.text)
        return "\n".join(out) + "\n"


class VmCount:
    def __init__(self, a):
        self.a = a
        self.issued = []
        self.done = 0

    def issue(self, tag):
        self.issued.append(tag)

    def wait(self, tag, extra=""):
        idx = max(i for i, t in enumerate(self.issued) if t == tag)
        if idx < self.done:
            if extra:
                self.a(f"s_waitcnt {extra}")
            return
        n = len(self.issued) - 1 - idx
        assert n <= 63
        self.a(f"s_waitcnt vmcnt({n}) {extra}")
        self.done = idx + 1

    def drain(self):
        self.a("s_waitcnt vmcnt(0)")
        self.done = len(self.issued)
```

```python
import sys, os
sys.path.insert(0, os.path.dirname(os.path.abspath(__file__)))
from asmlib import Asm, Alloc, R, VmCount

NAME = "parallel_sum__linear_attn_block__dense_activation_squared_relu__prompt"
KERN = NAME + "_kernel"

NKS = 118
A2_OFF = 0
A2_SIZE = 32 * NKS * 2048
KVP_OFF = 0x780000
ZP_OFF = KVP_OFF + 32 * 16 * 1024
FLA_OFF = ZP_OFF + 32 * 16 * 64
FLK_OFF = FLA_OFF + 16 * 512
EPO_OFF = FLK_OFF + 32 * 128
WS_USED = EPO_OFF + 128
STAMP_OFF = 0x900000
assert A2_SIZE <= KVP_OFF and WS_USED <= STAMP_OFF
OOB = 0x40000000

SLOT = 40960
QUART = 10240
WPART = 16384
STAT2 = 3 * SLOT + 8192
NMEAN = STAT2 + 1024
RSTD = NMEAN + 512
TAGL = 3 * SLOT + QUART + 8192
LDS_BYTES = 4 * SLOT

POLL_CAP = 1 << 15


def gen(opt):
    stamps = opt.get("stamps", False)
    DA = opt.get("DA", 4)
    ROT = opt.get("rot", 1)
    a = Asm()
    S = Alloc("s", 26, 102)
    sX, sWQKV, sWO, sW1, sB1, sW2, sB2 = (R("s", i, 2) for i in (4, 6, 8, 12, 14, 16, 18))
    sOUT, sDBG, sWS = R("s", 20, 2), R("s", 22, 2), R("s", 24, 2)
    sTag = S(2)
    srdA, srdB, srdC, srdD, srdWS = S(4), S(4), S(4), S(4), S(4)
    sWave, sW, sJ, sXcd, sR, sC, sTy, sT0, sNt = (S() for _ in range(9))
    sT = [S() for _ in range(8)]
    sCnt = S()
    sStamp = [S(2) for _ in range(10)] if stamps else None
    nstamp = [0]

    def stamp(i):
        if stamps:
            a(f"s_memrealtime {sStamp[i]}")

    def srd(dst, ptr, size):
        a(f"s_mov_b32 {dst[0]}, {ptr[0]}")
        a(f"s_mov_b32 {dst[1]}, {ptr[1]}")
        a(f"s_mov_b32 {dst[2]}, {size}")
        a(f"s_mov_b32 {dst[3]}, 0x20000")

    def write_stamps(vt):
        if not stamps:
            return
        a("s_waitcnt vmcnt(0) lgkmcnt(0)")
        a(f"s_lshl_b32 {sT[0]}, s2, 3")
        a(f"s_add_u32 {sT[0]}, {sT[0]}, {sWave}")
        a(f"s_lshl_b32 {sT[0]}, {sT[0]}, 6")
        a(f"s_add_u32 {sT[0]}, {sT[0]}, {STAMP_OFF}")
        a(f"s_mov_b32 {srdWS[2]}, {STAMP_OFF + 0x40000}")
        a(f"v_mov_b32 {vt[1]}, 0")
        a("s_mov_b64 exec, 1")
        for i in range(10):
            a(f"v_mov_b32 {vt[0]}, {sStamp[i][0]}")
            a(f"buffer_store_dword {vt[0]}, {vt[1]}, {srdWS}, {sT[0]} offen offset:{4 * i}")
        a("s_waitcnt vmcnt(0)")

    def poll(vaddr, soff, vtmp, srd_, imm=0, nonzero=False):
        L = a.uid("L_poll")
        D = a.uid("L_polldone")
        a(f"s_mov_b32 {sCnt}, 0")
        a.label(L)
        a(f"buffer_load_dwordx2 {vtmp}, {vaddr}, {srd_}, {soff} offen offset:{imm} sc1")
        a("s_waitcnt vmcnt(0)")
        if nonzero:
            a(f"v_cmp_ne_u64 vcc, 0, {vtmp}")
        else:
            a(f"v_cmp_eq_u64 vcc, {sTag}, {vtmp}")
        a("s_cmp_eq_u64 vcc, exec")
        a(f"s_cbranch_scc1 {D}")
        a(f"s_add_u32 {sCnt}, {sCnt}, 1")
        a(f"s_cmp_lt_u32 {sCnt}, {POLL_CAP}")
        a("s_sleep 1")
        a(f"s_cbranch_scc1 {L}")
        a.label(D)

    vLane = R("v", 1)
    a("s_cmp_ge_u32 s2, 0x100")
    a("s_cbranch_scc1 L_end")
    a("s_load_dwordx16 s[4:19], s[0:1], 0")
    a("s_load_dwordx4 s[20:23], s[0:1], 64")
    a("s_load_dwordx2 s[24:25], s[0:1], 80")
    if stamps:
        for i in range(10):
            a(f"s_mov_b64 {sStamp[i]}, 0")
    stamp(0)
    a("v_lshrrev_b32 v2, 6, v0")
    a(f"v_and_b32 {vLane}, 63, v0")
    a(f"v_readfirstlane_b32 {sWave}, v2")
    a(f"s_and_b32 {sXcd}, s2, 7")
    a(f"s_lshr_b32 {sJ}, s2, 3")
    if opt.get("codepf", 1):
        a(f"s_cmp_lg_u32 {sWave}, 0")
        a("s_cbranch_scc1 L_nopf")
        a(f"s_getpc_b64 {sTag}")
        a.label("L_pc")
        a(f"s_lshl_b32 {sT[0]}, {sJ}, 10")
        a(f"v_and_b32 v2, 7, v0")
        a(f"v_lshl_add_u32 v2, v2, 7, {sT[0]}")
        a("v_min_u32 v2, L_end-L_pc, v2")
        a(f"global_load_dword v255, v2, {sTag}")
        a.label("L_nopf")
    a(f"s_and_b32 {sT[0]}, {sXcd}, 1")
    a(f"s_lshl_b32 {sT[0]}, {sT[0]}, 3")
    a(f"s_and_b32 {sT[1]}, {sJ}, 7")
    a(f"s_add_u32 {sR}, {sT[0]}, {sT[1]}")
    a(f"s_lshr_b32 {sT[2]}, {sJ}, 3")
    a(f"s_lshr_b32 {sTy}, {sT[2]}, 1")
    a(f"s_and_b32 {sT[3]}, {sT[2]}, 1")
    a(f"s_and_b32 {sC}, {sXcd}, 6")
    a(f"s_add_u32 {sC}, {sC}, {sT[3]}")
    a(f"s_lshr_b32 {sT[4]}, {sXcd}, 1")
    a(f"s_mul_i32 {sT0}, {sT[4]}, 22")
    a(f"s_cmp_lt_u32 {sC}, 6")
    a(f"s_cselect_b32 {sT[5]}, 12, 10")
    a(f"s_cmp_eq_u32 {sT[3]}, 0")
    a(f"s_cselect_b32 {sNt}, {sT[5]}, 10")
    a(f"s_cselect_b32 {sT[5]}, 0, {sT[5]}")
    a(f"s_add_u32 {sT0}, {sT0}, {sT[5]}")
    a(f"s_and_b32 {sW}, {sWave}, 3")
    a(f"s_cmp_ge_u32 {sWave}, 4")
    a("s_cbranch_scc1 L_B")

    V = Alloc("v", 2, 256)
    vT = [V() for _ in range(6)]
    acc = [[V(4) for ms in range(8)] for nt in range(3)]
    cs = [V(4) for nt in range(3)]
    ones = V(4)
    vXa = [V(), V()]
    vWa = V()
    vL16 = V()
    vOne = V()
    vB1 = [V(2) for _ in range(3)]
    mFr = V.mark()
    xf = [[V(4) for ms in range(8)] for st in range(2)]
    wf = [[V(4) for nt in range(3)] for st in range(2)]
    sAdv = S()
    sEps, sL2e = S(2), S(2)

    for nt in range(3):
        for ms in range(8):
            a(f"v_mov_b64 {acc[nt][ms][0:2]}, 0")
            a(f"v_mov_b64 {acc[nt][ms][2:4]}, 0")
        a(f"v_mov_b64 {cs[nt][0:2]}, 0")
        a(f"v_mov_b64 {cs[nt][2:4]}, 0")
    for i in range(4):
        a(f"v_mov_b32 {ones[i]}, 0x3f803f80")
    a(f"v_and_b32 {vT[0]}, 15, {vLane}")
    a(f"v_lshrrev_b32 {vT[1]}, 4, {vLane}")
    a(f"v_lshrrev_b32 {vT[2]}, 1, {vT[0]}")
    a(f"v_xor_b32 {vT[2]}, {vT[2]}, {vT[1]}")
    a(f"v_lshlrev_b32 {vT[2]}, 4, {vT[2]}")
    a(f"v_lshl_add_u32 {vXa[0]}, {vT[0]}, 7, {vT[2]}")
    a(f"v_xor_b32 {vXa[1]}, 64, {vXa[0]}")
    a(f"v_bfe_u32 {vT[2]}, {vLane}, 2, 2")
    a(f"v_lshl_add_u32 {vT[3]}, {vT[1]}, 3, {vT[2]}")
    a(f"v_mul_u32_u24 {vT[3]}, 384, {vT[3]}")
    a(f"v_bfe_u32 {vT[2]}, {vLane}, 3, 2")
    a(f"v_xor_b32 {vT[2]}, {sW}, {vT[2]}")
    a(f"v_lshl_add_u32 {vT[3]}, {vT[2]}, 5, {vT[3]}")
    a(f"v_and_b32 {vT[2]}, 3, {vLane}")
    a(f"v_lshl_add_u32 {vWa}, {vT[2]}, 3, {vT[3]}")
    a(f"v_lshlrev_b32 {vL16}, 4, {vLane}")
    a(f"v_cmp_eq_u32 vcc, 0, {vLane}")
    a(f"v_mov_b32 {vT[2]}, {OOB}")
    a(f"v_cndmask_b32 {vOne}, {vT[2]}, {vLane}, vcc")
    a(f"s_mov_b32 {sEps[0]}, 0x358637bd")
    a(f"s_mov_b32 {sEps[1]}, 0x358637bd")
    a(f"s_mov_b32 {sL2e[0]}, 0x3fb8aa3b")
    a(f"s_mov_b32 {sL2e[1]}, 0x3fb8aa3b")
    a("s_waitcnt lgkmcnt(0)")
    srd(srdWS, sWS, WS_USED)
    srd(srdA, sB1, 2752)
    srd(srdB, sDBG, 256)
    a(f"s_or_b32 {sT[0]}, s2, {sWave}")
    a(f"s_cmp_lg_u32 {sT[0]}, 0")
    a("s_cbranch_scc1 L_notag")
    t2 = xf[0][0][0:2]
    a(f"s_mov_b32 {sT[0]}, {EPO_OFF}")
    a(f"buffer_load_dwordx2 {t2}, {vOne}, {srdWS}, {sT[0]} offen sc1")
    a("s_waitcnt vmcnt(0)")
    a(f"v_add_u32 {t2[0]}, 0x7f4a7c16, {t2[0]}")
    a(f"v_add_u32 {t2[1]}, 0x9e3779b9, {t2[1]}")
    a(f"v_or_b32 {t2[0]}, 1, {t2[0]}")
    a(f"buffer_store_dwordx2 {t2}, {vOne}, {srdB}, 0 offen sc1")
    a(f"buffer_store_dwordx2 {t2}, {vOne}, {srdWS}, {sT[0]} offen sc1")
    a("s_waitcnt vmcnt(0)")
    a.label("L_notag")
    a(f"s_cmp_eq_u32 {sTy}, 0")
    a("s_cbranch_scc1 L_Aq")
    a(f"v_lshlrev_b32 {vT[2]}, 3, {vT[1]}")
    a(f"s_add_u32 {sT[0]}, {sT0}, {sW}")
    a(f"s_lshl_b32 {sT[0]}, {sT[0]}, 5")
    for nt in range(3):
        a(f"buffer_load_dwordx2 {vB1[nt]}, {vT[2]}, {srdA}, {sT[0]} offen offset:{128 * nt}")

    def reads(st, kk):
        r = []
        for nt in range(3):
            for hf in range(2):
                r.append(f"ds_read_b64_tr_b16 {wf[st][nt][2 * hf:2 * hf + 2]}, {vWa} offset:{WPART + (32 * kk + 4 * hf) * 384 + nt * 128}")
        xs = [f"ds_read_b128 {xf[st][ms]}, {vXa[kk]} offset:{ms * 2048}" for ms in range(8)]
        return r[0:2] + xs[0:4] + r[2:4] + xs[4:8] + r[4:6]

    def mfmas(st, nm):
        m = []
        for nt in range(3):
            for ms in range(9):
                d = acc[nt][ms] if ms < 8 else cs[nt]
                x = xf[st][ms] if ms < 8 else ones
                A, B = (wf[st][nt], x) if nm[nt] else (x, wf[st][nt])
                m.append(f"v_mfma_f32_16x16x32_bf16 {d}, {A}, {B}, {d}")
        return m

    def interleave(ms_, other):
        o = list(other)
        for m in ms_:
            a(m)
            if o:
                a(o.pop(0))
        for x in o:
            a(x)

    def mainloop(tag, nm, tail_reads):
        a(f"s_mov_b32 {sCnt}, 0")
        a(f"s_mov_b32 {sT[0]}, 0")
        a("s_barrier")
        stamp(1)
        for r in reads(0, 0):
            a(r)
        a(".p2align 3")
        a.label(f"L_loop{tag}")
        a("s_waitcnt lgkmcnt(0)")
        a(f"s_add_u32 {sT[0]}, {sT[0]}, 1")
        interleave(mfmas(0, nm), reads(1, 1))
        a(f"s_cmp_eq_u32 {sT[0]}, 3")
        a(f"s_cselect_b32 {sT[0]}, 0, {sT[0]}")
        a(f"s_cselect_b32 {sAdv}, {(-2 * SLOT) & 0xffffffff}, {sT[1]}")
        a(f"s_add_u32 {sCnt}, {sCnt}, 1")
        a(f"s_cmp_eq_u32 {sCnt}, 8")
        a(f"v_add_u32 {vXa[0]}, {sAdv}, {vXa[0]}")
        a(f"v_add_u32 {vXa[1]}, {sAdv}, {vXa[1]}")
        a(f"v_add_u32 {vWa}, {sAdv}, {vWa}")
        a("s_waitcnt lgkmcnt(0)")
        a("s_barrier")
        a(f"s_cbranch_scc1 L_tail{tag}")
        interleave(mfmas(1, nm), reads(0, 0))
        a(f"s_branch L_loop{tag}")
        a(".p2align 3")
        a.label(f"L_tail{tag}")
        stamp(2)
        interleave(mfmas(1, nm), tail_reads)

    def tag_read(v2):
        a(f"v_readfirstlane_b32 {sTag[0]}, {v2[0]}")
        a(f"v_readfirstlane_b32 {sTag[1]}, {v2[1]}")

    def frag_store(q, soff_lo, soff_hi, u):
        a(f"v_permlane16_swap_b32 {q[0]}, {q[2]}")
        a(f"v_permlane16_swap_b32 {q[1]}, {q[3]}")
        so = soff_lo if u < 2 else soff_hi
        a(f"buffer_store_dwordx4 {q}, {vL16}, {srdWS}, {so} offen offset:{(u & 1) * 1024} sc1")

    def flag_store(soff, v2):
        a(f"v_mov_b32 {v2[0]}, {sTag[0]}")
        a(f"v_mov_b32 {v2[1]}, {sTag[1]}")
        a("s_waitcnt vmcnt(0)")
        a(f"buffer_store_dwordx2 {v2}, {vOne}, {srdWS}, {soff} offen sc1")

    a(f"s_mov_b32 {sT[1]}, {SLOT}")
    st2 = [xf[0][ms // 2][2 * (ms & 1):2 * (ms & 1) + 2] for ms in range(8)]
    vtag = xf[0][4][0:2]
    vSt = vT[4]
    vZero = vT[5]
    a(f"v_lshlrev_b32 {vSt}, 3, {vT[0]}")
    a(f"v_add_u32 {vSt}, {STAT2}, {vSt}")
    a(f"v_mov_b32 {vZero}, {TAGL}")
    tail = [f"ds_read_b64 {st2[ms]}, {vSt} offset:{128 * ms}" for ms in range(8)] + [f"ds_read_b64 {vtag}, {vZero}"]
    mainloop("H", [1, 1, 1], tail)
    bfp = [xf[0][5], xf[0][6], xf[0][7]]
    a("s_waitcnt vmcnt(0) lgkmcnt(0)")
    for nt in range(3):
        for i in range(2):
            a(f"v_lshlrev_b32 {bfp[nt][2 * i]}, 16, {vB1[nt][i]}")
            a(f"v_and_b32 {bfp[nt][2 * i + 1]}, 0xffff0000, {vB1[nt][i]}")
    tag_read(vtag)
    a(f"s_mul_i32 {sT[2]}, {sR}, {2 * NKS}")
    a(f"s_add_u32 {sT[2]}, {sT[2]}, {sT0}")
    a(f"s_add_u32 {sT[2]}, {sT[2]}, {sW}")
    a(f"s_lshl_b32 {sT[2]}, {sT[2]}, 11")
    a(f"s_add_u32 {sT[3]}, {sT[2]}, {NKS * 2048}")
    qs = [xf[1][i] for i in range(8)]
    qi = 0
    for nt in range(3):
        if nt == 2:
            a(f"s_add_u32 {sT[4]}, {sW}, 8")
            a(f"s_cmp_ge_u32 {sT[4]}, {sNt}")
            a("s_cbranch_scc1 L_Hdone")
        for u in range(4):
            q = qs[qi % 8]
            qi += 1
            for sub in range(2):
                ms = 2 * u + sub
                d = acc[nt][ms]
                for p in (0, 2):
                    a(f"v_pk_fma_f32 {d[p:p + 2]}, {cs[nt][p:p + 2]}, {st2[ms]}, {d[p:p + 2]} op_sel_hi:[1,0,1]")
                for p in (0, 2):
                    a(f"v_pk_fma_f32 {d[p:p + 2]}, {d[p:p + 2]}, {st2[ms]}, {bfp[nt][p:p + 2]} op_sel:[0,1,0]")
                for i in range(4):
                    a(f"v_max_f32 {d[i]}, 0, {d[i]}")
                for p in (0, 2):
                    a(f"v_pk_mul_f32 {d[p:p + 2]}, {d[p:p + 2]}, {d[p:p + 2]}")
                for p in (0, 2):
                    a(f"v_cvt_pk_bf16_f32 {q[2 * sub + p // 2]}, {d[p]}, {d[p + 1]}")
            frag_store(q, sT[2], sT[3], u)
        if nt < 2:
            a(f"s_add_u32 {sT[2]}, {sT[2]}, {4 * 2048}")
            a(f"s_add_u32 {sT[3]}, {sT[3]}, {4 * 2048}")
    a.label("L_Hdone")
    stamp(3)
    a(f"s_lshl_b32 {sT[2]}, {sR}, 4")
    a(f"s_add_u32 {sT[2]}, {sT[2]}, {sC}")
    a(f"s_lshl_b32 {sT[2]}, {sT[2]}, 2")
    a(f"s_add_u32 {sT[2]}, {sT[2]}, {sW}")
    a(f"s_lshl_b32 {sT[2]}, {sT[2]}, 3")
    a(f"s_add_u32 {sT[2]}, {sT[2]}, {FLA_OFF + 256}")
    flag_store(sT[2], vtag)
    stamp(4)
    write_stamps(vT)
    a("s_endpgm")

    a.label("L_Aq")
    a(f"s_mov_b32 {sT[1]}, {SLOT}")
    ex = [V(4) for _ in range(8)]
    nm4 = xf[0]
    rs4 = ex
    st2q = [wf[0][ms // 2][2 * (ms & 1):2 * (ms & 1) + 2] for ms in range(6)] + [vB1[0], vB1[1]]
    vtag = vB1[2]
    a(f"v_lshlrev_b32 {vSt}, 3, {vT[0]}")
    a(f"v_add_u32 {vSt}, {STAT2}, {vSt}")
    a(f"v_mov_b32 {vZero}, {TAGL}")
    a(f"v_lshlrev_b32 {vT[3]}, 4, {vT[1]}")
    a(f"v_add_u32 {vT[3]}, {NMEAN}, {vT[3]}")
    tail = []
    for ms in range(8):
        tail.append(f"ds_read_b128 {nm4[ms]}, {vT[3]} offset:{64 * ms}")
        tail.append(f"ds_read_b128 {rs4[ms]}, {vT[3]} offset:{512 + 64 * ms}")
    tail += [f"ds_read_b64 {st2q[ms]}, {vSt} offset:{128 * ms}" for ms in range(8)] + [f"ds_read_b64 {vtag}, {vZero}"]
    mainloop("Q", [1, 0, 0], tail)
    a("s_waitcnt vmcnt(0) lgkmcnt(0)")
    tag_read(vtag)
    tmp = wf[1][0]

    def phi(d, out2):
        for p in (0, 2):
            a(f"v_pk_mul_f32 {tmp[p:p + 2]}, {d[p:p + 2]}, {sL2e}")
        for i in range(4):
            a(f"v_exp_f32_e64 {tmp[i]}, {tmp[i]} clamp")
        for i in range(4):
            a(f"v_max_f32 {d[i]}, {sEps[0]}, {d[i]}")
        for p in (0, 2):
            a(f"v_pk_add_f32 {d[p:p + 2]}, {d[p:p + 2]}, {tmp[p:p + 2]}")
        for p in (0, 2):
            a(f"v_cvt_pk_bf16_f32 {out2[p // 2]}, {d[p]}, {d[p + 1]}")

    kvacc, zacc = wf[1][1], wf[1][2]
    for u in range(4):
        pk, vv = xf[1][2 * u], xf[1][2 * u + 1]
        for sub in range(2):
            ms = 2 * u + sub
            d = acc[2][ms]
            for p in (0, 2):
                a(f"v_pk_fma_f32 {d[p:p + 2]}, {nm4[ms][p:p + 2]}, {cs[2][0:2]}, {d[p:p + 2]}")
            for p in (0, 2):
                a(f"v_pk_mul_f32 {d[p:p + 2]}, {d[p:p + 2]}, {rs4[ms][p:p + 2]}")
            for p in (0, 2):
                a(f"v_cvt_pk_bf16_f32 {vv[2 * sub + p // 2]}, {d[p]}, {d[p + 1]}")
            d = acc[1][ms]
            for p in (0, 2):
                a(f"v_pk_fma_f32 {d[p:p + 2]}, {nm4[ms][p:p + 2]}, {cs[1][0:2]}, {d[p:p + 2]}")
            for p in (0, 2):
                a(f"v_pk_fma_f32 {d[p:p + 2]}, {d[p:p + 2]}, {rs4[ms][p:p + 2]}, {sEps}")
            phi(d, pk[2 * sub:2 * sub + 2])
        c0 = "0" if u == 0 else kvacc
        c1 = "0" if u == 0 else zacc
        a(f"v_mfma_f32_16x16x32_bf16 {kvacc}, {pk}, {vv}, {c0}")
        a(f"v_mfma_f32_16x16x32_bf16 {zacc}, {pk}, {ones}, {c1}")
    sHead, sSlot = sT[2], sT[3]
    a(f"s_lshl_b32 {sHead}, {sC}, 2")
    a(f"s_add_u32 {sHead}, {sHead}, {sW}")
    a(f"s_lshl_b32 {sSlot}, {sHead}, 4")
    a(f"s_add_u32 {sSlot}, {sSlot}, {sR}")
    a(f"s_lshl_b32 {sT[4]}, {sSlot}, 10")
    a(f"s_add_u32 {sT[4]}, {sT[4]}, {KVP_OFF}")
    a(f"s_lshl_b32 {sT[5]}, {sSlot}, 6")
    a(f"s_add_u32 {sT[5]}, {sT[5]}, {ZP_OFF}")
    a(f"v_cmp_eq_u32 vcc, 0, {vT[0]}")
    a(f"v_mov_b32 {vT[2]}, {OOB}")
    a(f"v_cndmask_b32 {vT[2]}, {vT[2]}, {vLane}, vcc")
    a(f"buffer_store_dwordx4 {kvacc}, {vL16}, {srdWS}, {sT[4]} offen sc1")
    a(f"buffer_store_dwordx4 {zacc}, {vT[2]}, {srdWS}, {sT[5]} offen sc1")
    stamp(3)
    pq = [xf[1][ms // 2][2 * (ms & 1):2 * (ms & 1) + 2] for ms in range(8)]
    for ms in range(8):
        d = acc[0][ms]
        for p in (0, 2):
            a(f"v_pk_fma_f32 {d[p:p + 2]}, {cs[0][p:p + 2]}, {st2q[ms]}, {d[p:p + 2]} op_sel_hi:[1,0,1]")
        for p in (0, 2):
            a(f"v_pk_fma_f32 {d[p:p + 2]}, {d[p:p + 2]}, {st2q[ms]}, {sEps} op_sel:[0,1,0]")
        phi(d, pq[ms])
    a(f"s_lshl_b32 {sT[4]}, {sSlot}, 3")
    a(f"s_add_u32 {sT[4]}, {sT[4]}, {FLK_OFF}")
    flag_store(sT[4], vtag)
    stamp(4)
    a(f"s_lshl_b32 {sT[4]}, {sHead}, 7")
    a(f"s_add_u32 {sT[4]}, {sT[4]}, {FLK_OFF}")
    a(f"v_lshlrev_b32 {vT[2]}, 3, {vT[0]}")
    poll(vT[2], sT[4], vB1[0], srdWS)
    stamp(5)
    part = acc[1] + acc[2]
    a(f"s_lshl_b32 {sT[4]}, {sHead}, 14")
    a(f"s_add_u32 {sT[4]}, {sT[4]}, {KVP_OFF}")
    a(f"s_lshl_b32 {sT[5]}, {sHead}, 10")
    a(f"s_add_u32 {sT[5]}, {sT[5]}, {ZP_OFF}")
    a(f"v_lshlrev_b32 {vT[2]}, 6, {vT[0]}")
    a(f"v_lshl_add_u32 {vT[2]}, {vT[1]}, 4, {vT[2]}")
    a(f"buffer_load_dwordx4 {zacc}, {vT[2]}, {srdWS}, {sT[5]} offen sc1")
    for i in range(16):
        a(f"buffer_load_dwordx4 {part[i]}, {vL16}, {srdWS}, {sT[4]} offen offset:{(i & 3) * 1024} sc1")
        if i & 3 == 3 and i < 15:
            a(f"s_add_u32 {sT[4]}, {sT[4]}, 4096")
    a("s_waitcnt vmcnt(16)")
    for sh in (8, 4, 2, 1):
        for i in range(4):
            a(f"v_add_f32_dpp {zacc[i]}, {zacc[i]}, {zacc[i]} row_ror:{sh} row_mask:0xf bank_mask:0xf")
    zb, kvb = tmp[0:2], tmp[2:4]
    a(f"v_cvt_pk_bf16_f32 {zb[0]}, {zacc[0]}, {zacc[1]}")
    a(f"v_cvt_pk_bf16_f32 {zb[1]}, {zacc[2]}, {zacc[3]}")
    den = ex
    for ms in range(8):
        a(f"v_mfma_f32_16x16x16_bf16 {den[ms]}, {zb}, {pq[ms]}, 0")
    for ms in range(8):
        a(f"v_add_f32 {den[ms][0]}, {sEps[0]}, {den[ms][0]}")
    for ms in range(8):
        a(f"v_rcp_f32 {den[ms][0]}, {den[ms][0]}")
    for i in range(2, 16, 2):
        a(f"s_waitcnt vmcnt({14 - i})")
        for k in range(2):
            for p in (0, 2):
                a(f"v_pk_add_f32 {part[k][p:p + 2]}, {part[k][p:p + 2]}, {part[i + k][p:p + 2]}")
    for p in (0, 2):
        a(f"v_pk_add_f32 {part[0][p:p + 2]}, {part[0][p:p + 2]}, {part[1][p:p + 2]}")
    a(f"v_cvt_pk_bf16_f32 {kvb[0]}, {part[0][0]}, {part[0][1]}")
    a(f"v_cvt_pk_bf16_f32 {kvb[1]}, {part[0][2]}, {part[0][3]}")
    stamp(6)
    num = acc[0]
    for ms in range(8):
        a(f"v_mfma_f32_16x16x16_bf16 {num[ms]}, {kvb}, {pq[ms]}, 0")
    a(f"s_mul_i32 {sT[4]}, {sR}, {2 * NKS}")
    a(f"s_add_u32 {sT[4]}, {sT[4]}, {sHead}")
    a(f"s_add_u32 {sT[4]}, {sT[4]}, 86")
    a(f"s_lshl_b32 {sT[4]}, {sT[4]}, 11")
    a(f"s_add_u32 {sT[5]}, {sT[4]}, {NKS * 2048}")
    for u in range(4):
        q = xf[0][u]
        for sub in range(2):
            ms = 2 * u + sub
            d = num[ms]
            for p in (0, 2):
                a(f"v_pk_mul_f32 {d[p:p + 2]}, {d[p:p + 2]}, {den[ms][0:2]} op_sel_hi:[1,0]")
            for p in (0, 2):
                a(f"v_cvt_pk_bf16_f32 {q[2 * sub + p // 2]}, {d[p]}, {d[p + 1]}")
        frag_store(q, sT[4], sT[5], u)
    a(f"s_lshl_b32 {sT[4]}, {sR}, 6")
    a(f"s_add_u32 {sT[4]}, {sT[4]}, {sHead}")
    a(f"s_lshl_b32 {sT[4]}, {sT[4]}, 3")
    a(f"s_add_u32 {sT[4]}, {sT[4]}, {FLA_OFF}")
    stamp(7)
    flag_store(sT[4], vtag)
    stamp(8)
    write_stamps(vT)
    a("s_endpgm")
    highA = V.high

    a.label("L_B")
    V = Alloc("v", 2, 256)
    vT = [V() for _ in range(6)]
    vx = [V(), V()]
    vw = [V() for _ in range(6)]
    vSa = V()
    sum_ = V(4)
    sq_ = V(4)
    xs = [V(4) for _ in range(4)]
    vtag = V(2)
    vOnesB = V()
    sRS, sBS, sKc, sSx, sSw, sM0x, sM0w, sCol, sRow = sT[0], sT[1], sAdv, sEps[0], sEps[1], sL2e[0], sL2e[1], S(), S()
    sSlotB = S()
    vm = VmCount(a)
    a(f"s_cmp_eq_u32 {sTy}, 0")
    a(f"s_movk_i32 {sRS}, 2752")
    a(f"s_movk_i32 {sBS}, 128")
    a(f"s_cselect_b32 {sRS}, 3072, {sRS}")
    a(f"s_cselect_b32 {sBS}, 1024, {sBS}")
    a(f"s_cselect_b32 {sNt}, 12, {sNt}")
    a(f"s_lshl_b32 {sT[2]}, {sC}, 7")
    a(f"s_lshl_b32 {sT[3]}, {sT0}, 5")
    a(f"s_cmp_eq_u32 {sTy}, 0")
    a(f"s_cselect_b32 {sCol}, {sT[2]}, {sT[3]}")
    a(f"v_lshrrev_b32 {vT[0]}, 3, {vLane}")
    a(f"v_and_b32 {vT[1]}, 7, {vLane}")
    a(f"v_lshrrev_b32 {vT[2]}, 4, {vLane}")
    a(f"v_xor_b32 {vT[2]}, {vT[2]}, {vT[1]}")
    a(f"v_lshlrev_b32 {vT[2]}, 4, {vT[2]}")
    a(f"v_lshl_add_u32 {vx[0]}, {vT[0]}, 10, {vT[2]}")
    a(f"v_xor_b32 {vx[1]}, 64, {vx[0]}")
    a(f"v_add_u32 {vx[1]}, 8192, {vx[1]}")
    for i in range(6):
        a(f"v_add_u32 {vT[2]}, {8 * i}, {vT[0]}")
        a(f"v_mul_u32_u24 {vT[3]}, 43, {vT[2]}")
        a(f"v_lshrrev_b32 {vT[3]}, 7, {vT[3]}")
        a(f"v_mad_i32_i24 {vT[2]}, {vT[3]}, -3, {vT[2]}")
        a(f"v_and_b32 {vT[4]}, 2, {vT[3]}")
        if i >= 3:
            a(f"v_or_b32 {vT[4]}, 4, {vT[4]}")
        a(f"v_xor_b32 {vT[4]}, {vT[4]}, {vT[1]}")
        a(f"v_mul_u32_u24 {vT[3]}, {sRS}, {vT[3]}")
        a(f"v_mad_u32_u24 {vT[3]}, {vT[2]}, {sBS}, {vT[3]}")
        a(f"v_lshl_add_u32 {vT[3]}, {vT[4]}, 4, {vT[3]}")
        a(f"v_lshrrev_b32 {vT[4]}, 1, {vT[4]}")
        a(f"v_lshl_add_u32 {vT[4]}, {vT[2]}, 2, {vT[4]}")
        a(f"v_cmp_gt_u32 vcc, {sNt}, {vT[4]}")
        a(f"v_mov_b32 {vT[5]}, {OOB}")
        a(f"v_cndmask_b32 {vw[i]}, {vT[5]}, {vT[3]}, vcc")
    if ROT:
        a(f"s_and_b32 {sT[2]}, {sJ}, 7")
        a(f"s_lshr_b32 {sT[3]}, {sJ}, 3")
        a(f"s_lshl_b32 {sT[3]}, {sT[3]}, 1")
        a(f"s_add_u32 {sKc}, {sT[2]}, {sT[3]}")
        a(f"s_lshr_b32 {sT[3]}, {sXcd}, 1")
        a(f"s_add_u32 {sKc}, {sKc}, {sT[3]}")
        a(f"s_and_b32 {sKc}, {sKc}, 7")
    else:
        a(f"s_mov_b32 {sKc}, 0")
    a(f"s_lshl_b32 {sRow}, {sR}, 2")
    a(f"s_add_u32 {sRow}, {sRow}, {sW}")
    a(f"s_lshl_b32 {sRow}, {sRow}, 15")
    a(f"s_mul_i32 {sT[2]}, {sW}, {sRS}")
    a(f"s_lshl_b32 {sT[2]}, {sT[2]}, 4")
    a(f"s_add_u32 {sCol}, {sCol}, {sT[2]}")
    a(f"s_lshl_b32 {sRS}, {sRS}, 6")
    a(f"s_lshl_b32 {sM0x}, {sW}, 12")
    a(f"s_mul_i32 {sM0w}, {sW}, 6144")
    a(f"s_add_u32 {sM0w}, {sM0w}, {WPART}")
    a(f"s_mov_b32 {sSlotB}, 0")
    a("s_waitcnt lgkmcnt(0)")
    srdX, srdW = srdA, srdB
    srd(srdX, sX, 2048 * 1024)
    a(f"s_cmp_eq_u32 {sTy}, 0")
    a(f"s_cselect_b32 {srdW[0]}, {sWQKV[0]}, {sW1[0]}")
    a(f"s_cselect_b32 {srdW[1]}, {sWQKV[1]}, {sW1[1]}")
    a(f"s_lshl_b32 {srdW[2]}, {sRS}, 3")
    a(f"s_mov_b32 {srdW[3]}, 0x20000")
    LDF = opt.get("ldflags", "")

    def chunk_ops(tag):
        g = []
        pre = [f"s_lshl_b32 {sSx}, {sKc}, 7", f"s_add_u32 {sSx}, {sSx}, {sRow}",
               f"s_mul_i32 {sSw}, {sKc}, {sRS}", f"s_add_u32 {sSw}, {sSw}, {sCol}",
               f"s_add_u32 {sKc}, {sKc}, 1", f"s_and_b32 {sKc}, {sKc}, 7",
               f"s_add_u32 m0, {sM0x}, {sSlotB}"]
        for i in range(4):
            x = pre if i == 0 else ["s_addk_i32 m0, 0x400"]
            if i == 2:
                x = x + [f"s_add_u32 {sSx}, {sSx}, 16384"]
            g.append(x + [f"buffer_load_dwordx4 {vx[i & 1]}, {srdX}, {sSx} offen {LDF} lds"])
        for i in range(6):
            x = [f"s_add_u32 m0, {sM0w}, {sSlotB}"] if i == 0 else ["s_addk_i32 m0, 0x400"]
            g.append(x + [f"buffer_load_dwordx4 {vw[i]}, {srdW}, {sSw} offen {LDF} lds"])
        g[-1] += [f"s_add_u32 {sSlotB}, {sSlotB}, {SLOT}", f"s_cmp_eq_u32 {sSlotB}, {3 * SLOT}",
                  f"s_cselect_b32 {sSlotB}, 0, {sSlotB}"]
        return g

    def emit_groups(groups, fill, tag, first_wait=None):
        fill = list(fill)
        per = (len(fill) + max(1, len(groups) - 2) - 1) // max(1, len(groups) - 2)
        for gi, g in enumerate(groups):
            for x in g:
                a(x)
            vm.issue(tag)
            if gi == 1 and first_wait:
                a(first_wait)
            if gi >= 1:
                for _ in range(per):
                    if fill:
                        a(fill.pop(0))
        for x in fill:
            a(x)

    emit_groups(chunk_ops(0), [], "c0")
    emit_groups(chunk_ops(1), [], "c1")
    stamp(1)
    srd(srdWS, sWS, WS_USED)
    srd(srdC, sW2, 1376 * 1024)
    srd(srdD, sDBG, 256)
    a(f"v_mov_b64 {sum_[0:2]}, 0")
    a(f"v_mov_b64 {sum_[2:4]}, 0")
    a(f"v_mov_b64 {sq_[0:2]}, 0")
    a(f"v_mov_b64 {sq_[2:4]}, 0")
    a(f"v_mov_b32 {vOnesB}, 0x3f803f80")
    vL16 = V()
    a(f"v_lshlrev_b32 {vL16}, 4, {vLane}")
    a(f"v_add_u32 {vSa}, {sM0x}, {vL16}")
    vW2 = V()
    a(f"v_and_b32 {vT[2]}, 2, {vT[0]}")
    a(f"v_lshlrev_b32 {vT[2]}, 1, {vT[2]}")
    a(f"v_xor_b32 {vT[2]}, {vT[2]}, {vT[1]}")
    a(f"v_lshlrev_b32 {vT[2]}, 4, {vT[2]}")
    a(f"v_lshl_add_u32 {vW2}, {vT[0]}, 10, {vT[2]}")
    vWr = [[V(), V()], [V(), V()]]
    sQ = S()
    a(f"s_mul_i32 {sQ}, {sW}, {QUART}")
    a(f"v_bfe_u32 {vT[2]}, {vLane}, 2, 2")
    a(f"v_lshrrev_b32 {vT[3]}, 5, {vLane}")
    a(f"v_lshl_add_u32 {vT[2]}, {vT[3]}, 3, {vT[2]}")
    a(f"v_lshlrev_b32 {vT[2]}, 7, {vT[2]}")
    a(f"v_bfe_u32 {vT[3]}, {vLane}, 4, 1")
    a(f"v_lshl_add_u32 {vT[2]}, {vT[3]}, 5, {vT[2]}")
    a(f"v_bfe_u32 {vT[3]}, {vLane}, 3, 1")
    a(f"v_lshl_add_u32 {vT[2]}, {vT[3]}, 6, {vT[2]}")
    a(f"v_and_b32 {vT[3]}, 3, {vLane}")
    a(f"v_lshl_add_u32 {vT[2]}, {vT[3]}, 3, {vT[2]}")
    a(f"v_add_u32 {vWr[0][0]}, {sQ}, {vT[2]}")
    a(f"v_xor_b32 {vWr[0][1]}, 64, {vWr[0][0]}")
    a(f"v_add_u32 {vWr[1][0]}, {2 * SLOT}, {vWr[0][0]}")
    a(f"v_add_u32 {vWr[1][1]}, {2 * SLOT}, {vWr[0][1]}")
    acc2 = [V(16) for _ in range(4)]
    for t in acc2:
        for i in range(0, 16, 2):
            a(f"v_mov_b64 {t[i:i + 2]}, 0")
    sRt, sCt, sWoff, sAoff = S(), S(), S(), S()
    a(f"s_lshr_b32 {sRt}, {sJ}, 3")
    a(f"s_lshl_b32 {sT[2]}, {sXcd}, 2")
    a(f"s_add_u32 {sRt}, {sRt}, {sT[2]}")
    a(f"s_and_b32 {sCt}, {sJ}, 7")
    a(f"s_lshl_b32 {sCt}, {sCt}, 7")
    a(f"s_mul_i32 {sWoff}, {sW}, {22 * 16384}")
    a(f"s_add_u32 {sWoff}, {sWoff}, {sCt}")

    stat_reads = [f"ds_read_b128 {xs[i]}, {vSa} offset:{1024 * i}" for i in range(4)]
    dots = []
    for k in range(4):
        for i in range(4):
            dots.append(f"v_dot2c_f32_bf16 {sum_[i]}, {xs[i][k]}, {vOnesB}")
        for i in range(4):
            dots.append(f"v_dot2c_f32_bf16 {sq_[i]}, {xs[i][k]}, {xs[i][k]}")
    sSl2 = sT[3]

    def adv_stat():
        a(f"s_add_u32 {sSl2}, {sSl2}, 1")
        a(f"s_cmp_eq_u32 {sSl2}, 3")
        a(f"s_cselect_b32 {sSl2}, 0, {sSl2}")
        a(f"s_cselect_b32 {sT[2]}, {(-2 * SLOT) & 0xffffffff}, {sT[4]}")
        a(f"v_add_u32 {vSa}, {sT[2]}, {vSa}")

    a(f"s_mov_b32 {sSl2}, 0")
    a(f"s_mov_b32 {sT[4]}, {SLOT}")
    a(f"s_mov_b32 {sCnt}, 0")
    a.label("L_Bloop")
    a("s_waitcnt vmcnt(10)")
    a("s_barrier")
    for r in stat_reads:
        a(r)
    adv_stat()
    emit_groups(chunk_ops(2), dots, "cl", "s_waitcnt lgkmcnt(0)")
    a(f"s_add_u32 {sCnt}, {sCnt}, 1")
    a(f"s_cmp_lt_u32 {sCnt}, 6")
    a("s_cbranch_scc1 L_Bloop")
    vm.issued = ["c6"] * 10 + ["c7"] * 10
    vm.done = 0

    cellslot = [3] * 4 + [2] * 5 + [0] * 5 + [1] * 5
    cellidx = list(range(4)) + list(range(5)) * 3

    def cell_off(s):
        c = s % 19
        return cellslot[c] * SLOT + cellidx[c] * 2048

    def w2_groups(s):
        pre = []
        if s == 22:
            pre = [f"s_mov_b32 {srdC[0]}, {sWO[0]}", f"s_mov_b32 {srdC[1]}, {sWO[1]}", f"s_mov_b32 {srdC[2]}, {512 * 1024}",
                   f"s_lshl_b32 {sWoff}, {sW}, 17", f"s_add_u32 {sWoff}, {sWoff}, {sCt}"]
        ld = f"buffer_load_dwordx4 {vW2}, {srdC}, {sWoff} offen {LDF} lds"
        adv = f"s_add_u32 {sWoff}, {sWoff}, 8192"
        return [pre + [f"s_add_u32 m0, {sQ}, {cell_off(s)}", ld, adv], ["s_addk_i32 m0, 0x400", ld, adv]]

    vm.wait("c6")
    a("s_barrier")
    for r in stat_reads:
        a(r)
    adv_stat()
    a(f"v_mov_b32 {vT[2]}, 0")
    a(f"buffer_load_dwordx2 {vtag}, {vT[2]}, {srdD}, 0 offen sc1")
    vm.issue("tag")
    emit_groups(sum((w2_groups(s) for s in range(0, 4)), []), dots, "p0", "s_waitcnt lgkmcnt(0)")
    vm.wait("tag")
    a("s_barrier")
    stamp(2)
    for r in stat_reads:
        a(r)
    a(f"v_cmp_ne_u64 vcc, 0, {vtag}")
    a("s_cmp_eq_u64 vcc, exec")
    a("s_cbranch_scc1 L_tagok")
    poll(vT[2], 0, vtag, srdD, nonzero=True)
    a.label("L_tagok")
    a(f"v_readfirstlane_b32 {sTag[0]}, {vtag[0]}")
    a(f"v_readfirstlane_b32 {sTag[1]}, {vtag[1]}")
    fin = list(dots)
    fin += ["s_nop 2"]
    for mode in ("quad_perm:[1,0,3,2]", "quad_perm:[2,3,0,1]", "row_half_mirror"):
        for t in (sum_, sq_):
            for i in range(4):
                fin.append(f"v_add_f32_dpp {t[i]}, {t[i]}, {t[i]} {mode} row_mask:0xf bank_mask:0xf")
    m_, q_ = xs[0][0], xs[0][1]
    st = xs[1]
    fin += [f"v_and_b32 {vT[3]}, 3, {vLane}",
            f"v_mov_b32 {m_}, {sum_[0]}", f"v_mov_b32 {q_}, {sq_[0]}"]
    for i in range(1, 4):
        fin += [f"v_cmp_eq_u32 vcc, {i}, {vT[3]}",
                f"s_nop 1",
                f"v_cndmask_b32 {m_}, {m_}, {sum_[i]}, vcc", f"v_cndmask_b32 {q_}, {q_}, {sq_[i]}, vcc"]
    fin += [f"v_mul_f32 {m_}, 0x3b000000, {m_}",
            f"v_mul_f32 {q_}, 0x3b000000, {q_}",
            f"v_fma_f32 {q_}, -{m_}, {m_}, {q_}",
            f"v_max_f32 {q_}, 0, {q_}",
            f"v_cvt_pk_bf16_f32 {m_}, {q_}, {m_}",
            f"v_lshlrev_b32 {q_}, 16, {m_}",
            f"v_and_b32 {m_}, 0xffff0000, {m_}",
            f"v_add_f32 {q_}, 0x3727c5ac, {q_}",
            f"v_cvt_pk_bf16_f32 {q_}, {q_}, {q_}",
            f"v_and_b32 {q_}, 0xffff0000, {q_}",
            f"v_sqrt_f32 {q_}, {q_}",
            f"v_xor_b32 {st[0]}, 0x80000000, {m_}",
            f"v_cvt_pk_bf16_f32 {q_}, {q_}, {q_}",
            f"v_and_b32 {q_}, 0xffff0000, {q_}",
            f"v_rcp_f32 {st[1]}, {q_}",
            f"v_lshl_add_u32 {vT[3]}, {vT[3]}, 3, {vT[0]}",
            f"s_lshl_b32 {sT[2]}, {sW}, 5",
            f"v_add_u32 {vT[3]}, {sT[2]}, {vT[3]}",
            f"v_lshlrev_b32 {vT[4]}, 3, {vT[3]}",
            f"v_lshlrev_b32 {vT[3]}, 2, {vT[3]}",
            f"v_add_u32 {vT[4]}, {STAT2}, {vT[4]}",
            f"v_add_u32 {vT[3]}, {NMEAN}, {vT[3]}",
            f"v_mov_b32 {vT[5]}, {TAGL}",
            f"ds_write_b64 {vT[4]}, {st[0:2]}",
            f"ds_write2_b32 {vT[3]}, {st[0]}, {st[1]} offset1:128",
            f"ds_write_b64 {vT[5]}, {vtag}"]
    emit_groups(sum((w2_groups(s) for s in range(4, 9)), []), fin, "p1", "s_waitcnt lgkmcnt(0)")
    a("s_waitcnt lgkmcnt(0)")
    a("s_barrier")
    stamp(3)
    emit_groups(sum((w2_groups(s) for s in range(9, 19)), []), [], "p2")
    xres = [V(4), V(4)]
    b2r = V(4)
    vOut = V()
    srd(srdB, sB2, 1024)
    a(f"v_lshlrev_b32 {vT[2]}, 4, {vT[1]}")
    a(f"v_lshl_add_u32 {vOut}, {vT[0]}, 10, {vT[2]}")
    sOo = S()
    a(f"s_lshl_b32 {sOo}, {sRt}, 2")
    a(f"s_add_u32 {sOo}, {sOo}, {sW}")
    a(f"s_lshl_b32 {sOo}, {sOo}, 14")
    a(f"s_add_u32 {sOo}, {sOo}, {sCt}")
    a(f"s_add_u32 {sT[5]}, {sOo}, 8192")
    a(f"buffer_load_dwordx4 {xres[0]}, {vOut}, {srdX}, {sOo} offen")
    a(f"buffer_load_dwordx4 {xres[1]}, {vOut}, {srdX}, {sT[5]} offen")
    a(f"buffer_load_dwordx4 {b2r}, {vT[2]}, {srdB}, {sCt} offen")
    srd(srdD, sOUT, 2048 * 1024)
    stamp(4)
    sFl = S()
    vFl = V()
    a(f"s_lshr_b32 {sFl}, {sRt}, 1")
    a(f"s_lshl_b32 {sFl}, {sFl}, 3")
    a(f"s_add_u32 {sFl}, {sFl}, {sW}")
    a(f"s_lshl_b32 {sFl}, {sFl}, 6")
    a(f"s_add_u32 {sFl}, {sFl}, {FLA_OFF}")
    a(f"v_lshlrev_b32 {vFl}, 3, {vT[1]}")
    a(f"s_mul_i32 {sAoff}, {sRt}, {NKS}")
    a(f"s_mul_i32 {sT[2]}, {sW}, 22")
    a(f"s_add_u32 {sAoff}, {sAoff}, {sT[2]}")
    a(f"s_lshl_b32 {sAoff}, {sAoff}, 11")
    poll(vFl, sFl, vtag, srdWS, imm=256)
    vm.issued, vm.done = [], 0
    stamp(5)
    af = [[V(4), V(4)] for _ in range(DA)]
    w2f = [[V(4), V(4)] for _ in range(2)]

    def a_load(s):
        if s >= 30:
            return
        if s == 20:
            a(f"s_cmp_eq_u32 {sW}, 3")
            a(f"s_cselect_b32 {sAoff}, {OOB}, {sAoff}")
        if s == 22:
            stamp(6)
            poll(vFl, sFl, vtag, srdWS, imm=0)
            stamp(7)
            vm.done = len(vm.issued)
            a(f"s_mul_i32 {sAoff}, {sRt}, {NKS}")
            a(f"s_lshl_b32 {sT[2]}, {sW}, 3")
            a(f"s_add_u32 {sAoff}, {sAoff}, {sT[2]}")
            a(f"s_add_u32 {sAoff}, {sAoff}, 86")
            a(f"s_lshl_b32 {sAoff}, {sAoff}, 11")
        for mt in range(2):
            a(f"buffer_load_dwordx4 {af[s % DA][mt]}, {vL16}, {srdWS}, {sAoff} offen offset:{1024 * mt} sc1")
            vm.issue(f"a{s}")
        a(f"s_add_u32 {sAoff}, {sAoff}, 2048")

    def w_reads(s):
        off = cell_off(s)
        hi = off >= 2 * SLOT
        off -= 2 * SLOT * hi
        return [f"ds_read_b64_tr_b16 {w2f[s & 1][nt][2 * hf:2 * hf + 2]}, {vWr[hi][nt]} offset:{off + 512 * hf}"
                for nt in range(2) for hf in range(2)]

    for s in range(DA):
        a_load(s)
    for r in w_reads(0):
        a(r)
    for s in range(30):
        vm.wait(f"a{s}", "lgkmcnt(0)")
        if s + 1 >= 19 and s + 1 < 30:
            vm.wait(f"w{s + 1}")
        mf = [f"v_mfma_f32_32x32x16_bf16 {acc2[nt + 2 * mt]}, {w2f[s & 1][nt]}, {af[s % DA][mt]}, {acc2[nt + 2 * mt]}"
              for mt in range(2) for nt in range(2)]
        interleave(mf, w_reads(s + 1) if s + 1 < 30 else [])
        a_load(s + DA)
        if s + 19 < 30:
            for g in w2_groups(s + 19):
                for x in g:
                    a(x)
                vm.issue(f"w{s + 19}")
    stamp(8)
    a(f"v_and_b32 {vT[2]}, 31, {vLane}")
    a(f"v_bfe_u32 {vT[3]}, {vLane}, 1, 2")
    a(f"v_and_b32 {vT[4]}, 1, {vLane}")
    a(f"v_lshl_or_b32 {vT[3]}, {vT[4]}, 2, {vT[3]}")
    a(f"v_lshrrev_b32 {vT[4]}, 5, {vLane}")
    a(f"v_xor_b32 {vT[3]}, {vT[3]}, {vT[4]}")
    a(f"v_lshlrev_b32 {vT[3]}, 4, {vT[3]}")
    a(f"v_lshl_add_u32 {vT[2]}, {vT[2]}, 7, {vT[3]}")
    wa = [[V() for g in range(4)] for hi in range(2)]
    a(f"v_add_u32 {wa[0][0]}, {sQ}, {vT[2]}")
    for g in range(1, 4):
        a(f"v_xor_b32 {wa[0][g]}, {32 * g}, {wa[0][0]}")
    for g in range(4):
        a(f"v_add_u32 {wa[1][g]}, {2 * SLOT}, {wa[0][g]}")
    for i in range(4):
        for g in range(4):
            a(f"ds_write_b128 {wa[i >> 1][g]}, {acc2[i][4 * g:4 * g + 4]} offset:{(i & 1) * SLOT}")
    a(f"s_lshr_b32 {sT[2]}, {sW}, 1")
    a(f"s_mul_i32 {sT[2]}, {sT[2]}, {2 * SLOT}")
    a(f"s_and_b32 {sT[3]}, {sW}, 1")
    a(f"s_lshl_b32 {sT[3]}, {sT[3]}, 11")
    a(f"s_add_u32 {sT[2]}, {sT[2]}, {sT[3]}")
    a(f"v_bfe_u32 {vT[2]}, {vLane}, 2, 1")
    a(f"v_mul_u32_u24 {vT[2]}, {SLOT}, {vT[2]}")
    a(f"v_lshl_add_u32 {vT[2]}, {vT[0]}, 7, {vT[2]}")
    a(f"v_bfe_u32 {vT[3]}, {vLane}, 4, 2")
    a(f"v_bfe_u32 {vT[4]}, {vLane}, 3, 1")
    a(f"v_lshl_or_b32 {vT[3]}, {vT[4]}, 2, {vT[3]}")
    a(f"v_and_b32 {vT[4]}, 3, {vLane}")
    a(f"v_lshlrev_b32 {vT[4]}, 1, {vT[4]}")
    a(f"v_xor_b32 {vT[3]}, {vT[3]}, {vT[4]}")
    a(f"v_lshl_add_u32 {vT[2]}, {vT[3]}, 4, {vT[2]}")
    a(f"v_add_u32 {vT[2]}, {sT[2]}, {vT[2]}")
    a(f"v_xor_b32 {vT[3]}, 16, {vT[2]}")
    ad = [V(8), V(8)]
    bb = V(8)
    for i in range(4):
        a(f"v_lshlrev_b32 {bb[2 * i]}, 16, {b2r[i]}")
        a(f"v_and_b32 {bb[2 * i + 1]}, 0xffff0000, {b2r[i]}")
    for ps in range(2):
        for i in range(4):
            a(f"v_lshlrev_b32 {ad[ps][2 * i]}, 16, {xres[ps][i]}")
            a(f"v_and_b32 {ad[ps][2 * i + 1]}, 0xffff0000, {xres[ps][i]}")
        for i in range(0, 8, 2):
            a(f"v_pk_add_f32 {ad[ps][i:i + 2]}, {ad[ps][i:i + 2]}, {bb[i:i + 2]}")
    a("s_waitcnt lgkmcnt(0)")
    a("s_barrier")
    for ps in range(2):
        for src in range(4):
            for k in range(2):
                a(f"ds_read_b128 {acc2[src][8 * ps + 4 * k:8 * ps + 4 * k + 4]}, {vT[2 + k]} offset:{src * QUART + ps * 1024}")
    for ps in range(2):
        for src in range(4):
            a(f"s_waitcnt lgkmcnt({14 - 8 * ps - 2 * src})")
            for i in range(0, 8, 2):
                a(f"v_pk_add_f32 {ad[ps][i:i + 2]}, {ad[ps][i:i + 2]}, {acc2[src][8 * ps + i:8 * ps + i + 2]}")
        for i in range(4):
            a(f"v_cvt_pk_bf16_f32 {xres[ps][i]}, {ad[ps][2 * i]}, {ad[ps][2 * i + 1]}")
        a(f"buffer_store_dwordx4 {xres[ps]}, {vOut}, {srdD}, {sOo if ps == 0 else sT[5]} offen {opt.get('outflags', '')}")
    stamp(9)
    write_stamps(vT)
    a.label("L_end")
    a("s_endpgm")
    body = a.finish(verbose=opt.get("verbose", False))
    if opt.get("verbose"):
        print("vgpr A", highA, "B", V.high, "sgpr", S.high)

    ref = open(os.path.join(os.path.dirname(os.path.abspath(__file__)), "header.txt")).read()
    txt = ref + f"; @launch grid=(256,1,1) block=(512,1,1) lds={LDS_BYTES}\n"
    txt += f""".amdgcn_target "amdgcn-amd-amdhsa--gfx950"
.text
.globl {KERN}
.p2align 8
.type {KERN},@function
{KERN}:
{body}.section .rodata,"a"
.p2align 6
.amdhsa_kernel {KERN}
  .amdhsa_next_free_vgpr 256
  .amdhsa_next_free_sgpr 102
  .amdhsa_accum_offset 256
  .amdhsa_group_segment_fixed_size 0
  .amdhsa_kernarg_size 88
  .amdhsa_user_sgpr_count 2
  .amdhsa_user_sgpr_kernarg_segment_ptr 1
  .amdhsa_system_sgpr_workgroup_id_x 1
  .amdhsa_float_denorm_mode_32 3
.end_amdhsa_kernel
"""
    return txt


if __name__ == "__main__":
    import json
    opt = json.loads(sys.argv[2]) if len(sys.argv) > 2 else {}
    opt.setdefault("verbose", True)
    out = sys.argv[1] if len(sys.argv) > 1 else f"cdna_kernels/{NAME}.s"
    open(out, "w").write(gen(opt))
```

```python
import sys, os
sys.path.insert(0, os.path.dirname(os.path.abspath(__file__)))
from asmlib import Asm, Alloc, R, VmCount

NAME = "parallel_sum__linear_attn_block__dense_activation_squared_relu__prompt"
KERN = NAME + "_kernel"

NKS = 118
A2_OFF = 0
A2_SIZE = 32 * NKS * 2048
KVP_OFF = 0x780000
ZP_OFF = KVP_OFF + 32 * 16 * 1024
FLA_OFF = ZP_OFF + 32 * 16 * 64
FLK_OFF = FLA_OFF + 16 * 512
EPO_OFF = FLK_OFF + 32 * 128
WS_USED = EPO_OFF + 128
STAMP_OFF = 0x900000
assert A2_SIZE <= KVP_OFF and WS_USED <= STAMP_OFF
OOB = 0x40000000

SLOT = 40960
QUART = 10240
WPART = 16384
STAT2 = 3 * SLOT + 8192
NMEAN = STAT2 + 1024
RSTD = NMEAN + 512
TAGL = 3 * SLOT + QUART + 8192
LDS_BYTES = 4 * SLOT

POLL_CAP = 1 << 15


def gen(opt):
    stamps = opt.get("stamps", False)
    DA = opt.get("DA", 4)
    ROT = opt.get("rot", 1)
    a = Asm()
    S = Alloc("s", 26, 102)
    sX, sWQKV, sWO, sW1, sB1, sW2, sB2 = (R("s", i, 2) for i in (4, 6, 8, 12, 14, 16, 18))
    sOUT, sDBG, sWS = R("s", 20, 2), R("s", 22, 2), R("s", 24, 2)
    sTag = S(2)
    srdA, srdB, srdC, srdD, srdWS = S(4), S(4), S(4), S(4), S(4)
    sWave, sW, sJ, sXcd, sR, sC, sTy, sT0, sNt = (S() for _ in range(9))
    sT = [S() for _ in range(8)]
    sCnt = S()
    sStamp = [S(2) for _ in range(10)] if stamps else None
    nstamp = [0]

    def stamp(i):
        if stamps:
            a(f"{'s_memtime' if opt.get('cyc') else 's_memrealtime'} {sStamp[i]} ; s_memrealtime")

    def srd(dst, ptr, size):
        a(f"s_mov_b32 {dst[0]}, {ptr[0]}")
        a(f"s_mov_b32 {dst[1]}, {ptr[1]}")
        a(f"s_mov_b32 {dst[2]}, {size}")
        a(f"s_mov_b32 {dst[3]}, 0x20000")

    def write_stamps(vt):
        if not stamps or "amp" in opt:
            return
        a("s_waitcnt vmcnt(0) lgkmcnt(0)")
        a(f"s_lshl_b32 {sT[0]}, s2, 3")
        a(f"s_add_u32 {sT[0]}, {sT[0]}, {sWave}")
        a(f"s_lshl_b32 {sT[0]}, {sT[0]}, 6")
        a(f"s_add_u32 {sT[0]}, {sT[0]}, {STAMP_OFF}")
        a(f"s_mov_b32 {srdWS[2]}, {STAMP_OFF + 0x40000}")
        a(f"v_mov_b32 {vt[1]}, 0")
        a("s_mov_b64 exec, 1")
        for i in range(10):
            a(f"v_mov_b32 {vt[0]}, {sStamp[i][0]}")
            a(f"buffer_store_dword {vt[0]}, {vt[1]}, {srdWS}, {sT[0]} offen offset:{4 * i}")
        a("s_waitcnt vmcnt(0)")

    def poll(vaddr, soff, vtmp, srd_, imm=0, nonzero=False):
        L = a.uid("L_poll")
        D = a.uid("L_polldone")
        a(f"s_mov_b32 {sCnt}, 0")
        a.label(L)
        a(f"buffer_load_dwordx2 {vtmp}, {vaddr}, {srd_}, {soff} offen offset:{imm} sc1")
        a("s_waitcnt vmcnt(0)")
        if nonzero:
            a(f"v_cmp_ne_u64 vcc, 0, {vtmp}")
        else:
            a(f"v_cmp_eq_u64 vcc, {sTag}, {vtmp}")
        a("s_cmp_eq_u64 vcc, exec")
        a(f"s_cbranch_scc1 {D}")
        a(f"s_add_u32 {sCnt}, {sCnt}, 1")
        a(f"s_cmp_lt_u32 {sCnt}, {POLL_CAP}")
        a("s_sleep 1")
        a(f"s_cbranch_scc1 {L}")
        a.label(D)

    vLane = R("v", 1)
    a("s_cmp_ge_u32 s2, 0x100")
    a("s_cbranch_scc1 L_end")
    a("s_load_dwordx16 s[4:19], s[0:1], 0")
    a("s_load_dwordx4 s[20:23], s[0:1], 64")
    a("s_load_dwordx2 s[24:25], s[0:1], 80")
    if stamps:
        for i in range(10):
            a(f"s_mov_b64 {sStamp[i]}, 0")
    stamp(0)
    a("v_lshrrev_b32 v2, 6, v0")
    a(f"v_and_b32 {vLane}, 63, v0")
    a(f"v_readfirstlane_b32 {sWave}, v2")
    a(f"s_and_b32 {sXcd}, s2, 7")
    a(f"s_lshr_b32 {sJ}, s2, 3")
    if opt.get("codepf", 1):
        a(f"s_cmp_lg_u32 {sWave}, 0")
        a("s_cbranch_scc1 L_nopf")
        a(f"s_getpc_b64 {sTag}")
        a.label("L_pc")
        a(f"s_lshl_b32 {sT[0]}, {sJ}, 10")
        a(f"v_and_b32 v2, 7, v0")
        a(f"v_lshl_add_u32 v2, v2, 7, {sT[0]}")
        a("v_min_u32 v2, L_end-L_pc, v2")
        a(f"global_load_dword v255, v2, {sTag}")
        a.label("L_nopf")
    a(f"s_and_b32 {sT[0]}, {sXcd}, 1")
    a(f"s_lshl_b32 {sT[0]}, {sT[0]}, 3")
    a(f"s_and_b32 {sT[1]}, {sJ}, 7")
    a(f"s_add_u32 {sR}, {sT[0]}, {sT[1]}")
    a(f"s_lshr_b32 {sT[2]}, {sJ}, 3")
    a(f"s_lshr_b32 {sTy}, {sT[2]}, 1")
    a(f"s_and_b32 {sT[3]}, {sT[2]}, 1")
    a(f"s_and_b32 {sC}, {sXcd}, 6")
    a(f"s_add_u32 {sC}, {sC}, {sT[3]}")
    a(f"s_lshr_b32 {sT[4]}, {sXcd}, 1")
    a(f"s_mul_i32 {sT0}, {sT[4]}, 22")
    a(f"s_cmp_lt_u32 {sC}, 6")
    a(f"s_cselect_b32 {sT[5]}, 12, 10")
    a(f"s_cmp_eq_u32 {sT[3]}, 0")
    a(f"s_cselect_b32 {sNt}, {sT[5]}, 10")
    a(f"s_cselect_b32 {sT[5]}, 0, {sT[5]}")
    a(f"s_add_u32 {sT0}, {sT0}, {sT[5]}")
    a(f"s_and_b32 {sW}, {sWave}, 3")
    a(f"s_cmp_ge_u32 {sWave}, 4")
    a("s_cbranch_scc1 L_B")

    V = Alloc("v", 2, 256)
    vT = [V() for _ in range(6)]
    acc = [[V(4) for ms in range(8)] for nt in range(3)]
    cs = [V(4) for nt in range(3)]
    ones = V(4)
    vXa = [V(), V()]
    vWa = V()
    vL16 = V()
    vOne = V()
    vB1 = [V(2) for _ in range(3)]
    mFr = V.mark()
    xf = [[V(4) for ms in range(8)] for st in range(2)]
    wf = [[V(4) for nt in range(3)] for st in range(2)]
    sAdv = S()
    sEps, sL2e = S(2), S(2)

    for nt in range(3):
        for ms in range(8):
            a(f"v_mov_b64 {acc[nt][ms][0:2]}, 0")
            a(f"v_mov_b64 {acc[nt][ms][2:4]}, 0")
        a(f"v_mov_b64 {cs[nt][0:2]}, 0")
        a(f"v_mov_b64 {cs[nt][2:4]}, 0")
    for i in range(4):
        a(f"v_mov_b32 {ones[i]}, 0x3f803f80")
    a(f"v_and_b32 {vT[0]}, 15, {vLane}")
    a(f"v_lshrrev_b32 {vT[1]}, 4, {vLane}")
    a(f"v_lshrrev_b32 {vT[2]}, 1, {vT[0]}")
    a(f"v_xor_b32 {vT[2]}, {vT[2]}, {vT[1]}")
    a(f"v_lshlrev_b32 {vT[2]}, 4, {vT[2]}")
    a(f"v_lshl_add_u32 {vXa[0]}, {vT[0]}, 7, {vT[2]}")
    a(f"v_xor_b32 {vXa[1]}, 64, {vXa[0]}")
    a(f"v_bfe_u32 {vT[2]}, {vLane}, 2, 2")
    a(f"v_lshl_add_u32 {vT[3]}, {vT[1]}, 3, {vT[2]}")
    a(f"v_mul_u32_u24 {vT[3]}, 384, {vT[3]}")
    a(f"v_bfe_u32 {vT[2]}, {vLane}, 3, 2")
    a(f"v_xor_b32 {vT[2]}, {sW}, {vT[2]}")
    a(f"v_lshl_add_u32 {vT[3]}, {vT[2]}, 5, {vT[3]}")
    a(f"v_and_b32 {vT[2]}, 3, {vLane}")
    a(f"v_lshl_add_u32 {vWa}, {vT[2]}, 3, {vT[3]}")
    a(f"v_lshlrev_b32 {vL16}, 4, {vLane}")
    a(f"v_cmp_eq_u32 vcc, 0, {vLane}")
    a(f"v_mov_b32 {vT[2]}, {OOB}")
    a(f"v_cndmask_b32 {vOne}, {vT[2]}, {vLane}, vcc")
    a(f"s_mov_b32 {sEps[0]}, 0x358637bd")
    a(f"s_mov_b32 {sEps[1]}, 0x358637bd")
    a(f"s_mov_b32 {sL2e[0]}, 0x3fb8aa3b")
    a(f"s_mov_b32 {sL2e[1]}, 0x3fb8aa3b")
    a("s_waitcnt lgkmcnt(0)")
    srd(srdWS, sWS, WS_USED)
    srd(srdA, sB1, 2752)
    srd(srdB, sDBG, 256)
    a(f"s_or_b32 {sT[0]}, s2, {sWave}")
    a(f"s_cmp_lg_u32 {sT[0]}, 0")
    a("s_cbranch_scc1 L_notag")
    t2 = xf[0][0][0:2]
    a(f"s_mov_b32 {sT[0]}, {EPO_OFF}")
    a(f"buffer_load_dwordx2 {t2}, {vOne}, {srdWS}, {sT[0]} offen sc1")
    a("s_waitcnt vmcnt(0)")
    a(f"v_add_u32 {t2[0]}, 0x7f4a7c16, {t2[0]}")
    a(f"v_add_u32 {t2[1]}, 0x9e3779b9, {t2[1]}")
    a(f"v_or_b32 {t2[0]}, 1, {t2[0]}")
    a(f"buffer_store_dwordx2 {t2}, {vOne}, {srdB}, 0 offen sc1")
    a(f"buffer_store_dwordx2 {t2}, {vOne}, {srdWS}, {sT[0]} offen sc1")
    a("s_waitcnt vmcnt(0)")
    a.label("L_notag")
    a(f"s_cmp_eq_u32 {sTy}, 0")
    a("s_cbranch_scc1 L_Aq")
    a(f"v_lshlrev_b32 {vT[2]}, 3, {vT[1]}")
    a(f"s_add_u32 {sT[0]}, {sT0}, {sW}")
    a(f"s_lshl_b32 {sT[0]}, {sT[0]}, 5")
    for nt in range(3):
        a(f"buffer_load_dwordx2 {vB1[nt]}, {vT[2]}, {srdA}, {sT[0]} offen offset:{128 * nt}")

    def reads(st, kk):
        r = []
        for nt in range(3):
            for hf in range(2):
                r.append(f"ds_read_b64_tr_b16 {wf[st][nt][2 * hf:2 * hf + 2]}, {vWa} offset:{WPART + (32 * kk + 4 * hf) * 384 + nt * 128}")
        xs = [f"ds_read_b128 {xf[st][ms]}, {vXa[kk]} offset:{ms * 2048}" for ms in range(8)]
        if opt.get("x_noread"): return []
        return r[0:2] + xs[0:4] + r[2:4] + xs[4:8] + r[4:6]

    def mfmas(st, nm):
        m = []
        for nt in range(3):
            for ms in range(9):
                d = acc[nt][ms] if ms < 8 else cs[nt]
                x = xf[st][ms] if ms < 8 else ones
                A, B = (wf[st][nt], x) if nm[nt] else (x, wf[st][nt])
                m.append(f"v_mfma_f32_16x16x32_bf16 {d}, {A}, {B}, {d}")
        if opt.get("x_nomfma"): return []
        return m

    def interleave(ms_, other):
        o = list(other)
        for m in ms_:
            a(m)
            if o:
                a(o.pop(0))
        for x in o:
            a(x)

    def mainloop(tag, nm, tail_reads):
        a(f"s_mov_b32 {sCnt}, 0")
        a(f"s_mov_b32 {sT[0]}, 0")
        a("s_barrier")
        stamp(1)
        for r in reads(0, 0):
            a(r)
        a(".p2align 3")
        a.label(f"L_loop{tag}")
        a("s_waitcnt lgkmcnt(0)")
        a(f"s_add_u32 {sT[0]}, {sT[0]}, 1")
        interleave(mfmas(0, nm), reads(1, 1))
        a(f"s_cmp_eq_u32 {sT[0]}, 3")
        a(f"s_cselect_b32 {sT[0]}, 0, {sT[0]}")
        a(f"s_cselect_b32 {sAdv}, {(-2 * SLOT) & 0xffffffff}, {sT[1]}")
        a(f"s_add_u32 {sCnt}, {sCnt}, 1")
        a(f"s_cmp_eq_u32 {sCnt}, 8")
        a(f"v_add_u32 {vXa[0]}, {sAdv}, {vXa[0]}")
        a(f"v_add_u32 {vXa[1]}, {sAdv}, {vXa[1]}")
        a(f"v_add_u32 {vWa}, {sAdv}, {vWa}")
        a("s_waitcnt lgkmcnt(0)")
        a("s_barrier")
        a(f"s_cbranch_scc1 L_tail{tag}")
        interleave(mfmas(1, nm), reads(0, 0))
        a(f"s_branch L_loop{tag}")
        a(".p2align 3")
        a.label(f"L_tail{tag}")
        stamp(2)
        interleave(mfmas(1, nm), tail_reads)

    def tag_read(v2):
        a(f"v_readfirstlane_b32 {sTag[0]}, {v2[0]}")
        a(f"v_readfirstlane_b32 {sTag[1]}, {v2[1]}")

    def frag_store(q, soff_lo, soff_hi, u):
        a(f"v_permlane16_swap_b32 {q[0]}, {q[2]}")
        a(f"v_permlane16_swap_b32 {q[1]}, {q[3]}")
        so = soff_lo if u < 2 else soff_hi
        a(f"buffer_store_dwordx4 {q}, {vL16}, {srdWS}, {so} offen offset:{(u & 1) * 1024} sc1")

    def flag_store(soff, v2):
        a(f"v_mov_b32 {v2[0]}, {sTag[0]}")
        a(f"v_mov_b32 {v2[1]}, {sTag[1]}")
        a("s_waitcnt vmcnt(0)")
        a(f"buffer_store_dwordx2 {v2}, {vOne}, {srdWS}, {soff} offen sc1")

    a(f"s_mov_b32 {sT[1]}, {SLOT}")
    st2 = [xf[0][ms // 2][2 * (ms & 1):2 * (ms & 1) + 2] for ms in range(8)]
    vtag = xf[0][4][0:2]
    vSt = vT[4]
    vZero = vT[5]
    a(f"v_lshlrev_b32 {vSt}, 3, {vT[0]}")
    a(f"v_add_u32 {vSt}, {STAT2}, {vSt}")
    a(f"v_mov_b32 {vZero}, {TAGL}")
    tail = [f"ds_read_b64 {st2[ms]}, {vSt} offset:{128 * ms}" for ms in range(8)] + [f"ds_read_b64 {vtag}, {vZero}"]
    mainloop("H", [1, 1, 1], tail)
    bfp = [xf[0][5], xf[0][6], xf[0][7]]
    a("s_waitcnt vmcnt(0) lgkmcnt(0)")
    for nt in range(3):
        for i in range(2):
            a(f"v_lshlrev_b32 {bfp[nt][2 * i]}, 16, {vB1[nt][i]}")
            a(f"v_and_b32 {bfp[nt][2 * i + 1]}, 0xffff0000, {vB1[nt][i]}")
    tag_read(vtag)
    a(f"s_mul_i32 {sT[2]}, {sR}, {2 * NKS}")
    a(f"s_add_u32 {sT[2]}, {sT[2]}, {sT0}")
    a(f"s_add_u32 {sT[2]}, {sT[2]}, {sW}")
    a(f"s_lshl_b32 {sT[2]}, {sT[2]}, 11")
    a(f"s_add_u32 {sT[3]}, {sT[2]}, {NKS * 2048}")
    qs = [xf[1][i] for i in range(8)]
    qi = 0
    for nt in range(3):
        if nt == 2:
            a(f"s_add_u32 {sT[4]}, {sW}, 8")
            a(f"s_cmp_ge_u32 {sT[4]}, {sNt}")
            a("s_cbranch_scc1 L_Hdone")
        for u in range(4):
            q = qs[qi % 8]
            qi += 1
            for sub in range(2):
                ms = 2 * u + sub
                d = acc[nt][ms]
                for p in (0, 2):
                    a(f"v_pk_fma_f32 {d[p:p + 2]}, {cs[nt][p:p + 2]}, {st2[ms]}, {d[p:p + 2]} op_sel_hi:[1,0,1]")
                for p in (0, 2):
                    a(f"v_pk_fma_f32 {d[p:p + 2]}, {d[p:p + 2]}, {st2[ms]}, {bfp[nt][p:p + 2]} op_sel:[0,1,0]")
                for i in range(4):
                    a(f"v_max_f32 {d[i]}, 0, {d[i]}")
                for p in (0, 2):
                    a(f"v_pk_mul_f32 {d[p:p + 2]}, {d[p:p + 2]}, {d[p:p + 2]}")
                for p in (0, 2):
                    a(f"v_cvt_pk_bf16_f32 {q[2 * sub + p // 2]}, {d[p]}, {d[p + 1]}")
            frag_store(q, sT[2], sT[3], u)
        if nt < 2:
            a(f"s_add_u32 {sT[2]}, {sT[2]}, {4 * 2048}")
            a(f"s_add_u32 {sT[3]}, {sT[3]}, {4 * 2048}")
    a.label("L_Hdone")
    stamp(3)
    a(f"s_lshl_b32 {sT[2]}, {sR}, 4")
    a(f"s_add_u32 {sT[2]}, {sT[2]}, {sC}")
    a(f"s_lshl_b32 {sT[2]}, {sT[2]}, 2")
    a(f"s_add_u32 {sT[2]}, {sT[2]}, {sW}")
    a(f"s_lshl_b32 {sT[2]}, {sT[2]}, 3")
    a(f"s_add_u32 {sT[2]}, {sT[2]}, {FLA_OFF + 256}")
    flag_store(sT[2], vtag)
    stamp(4)
    write_stamps(vT)
    a("s_endpgm")

    a.label("L_Aq")
    a(f"s_mov_b32 {sT[1]}, {SLOT}")
    ex = [V(4) for _ in range(8)]
    nm4 = xf[0]
    rs4 = ex
    st2q = [wf[0][ms // 2][2 * (ms & 1):2 * (ms & 1) + 2] for ms in range(6)] + [vB1[0], vB1[1]]
    vtag = vB1[2]
    a(f"v_lshlrev_b32 {vSt}, 3, {vT[0]}")
    a(f"v_add_u32 {vSt}, {STAT2}, {vSt}")
    a(f"v_mov_b32 {vZero}, {TAGL}")
    a(f"v_lshlrev_b32 {vT[3]}, 4, {vT[1]}")
    a(f"v_add_u32 {vT[3]}, {NMEAN}, {vT[3]}")
    tail = []
    for ms in range(8):
        tail.append(f"ds_read_b128 {nm4[ms]}, {vT[3]} offset:{64 * ms}")
        tail.append(f"ds_read_b128 {rs4[ms]}, {vT[3]} offset:{512 + 64 * ms}")
    tail += [f"ds_read_b64 {st2q[ms]}, {vSt} offset:{128 * ms}" for ms in range(8)] + [f"ds_read_b64 {vtag}, {vZero}"]
    mainloop("Q", [1, 0, 0], tail)
    a("s_waitcnt vmcnt(0) lgkmcnt(0)")
    tag_read(vtag)
    tmp = wf[1][0]

    def phi(d, out2):
        for p in (0, 2):
            a(f"v_pk_mul_f32 {tmp[p:p + 2]}, {d[p:p + 2]}, {sL2e}")
        for i in range(4):
            a(f"v_exp_f32_e64 {tmp[i]}, {tmp[i]} clamp")
        for i in range(4):
            a(f"v_max_f32 {d[i]}, {sEps[0]}, {d[i]}")
        for p in (0, 2):
            a(f"v_pk_add_f32 {d[p:p + 2]}, {d[p:p + 2]}, {tmp[p:p + 2]}")
        for p in (0, 2):
            a(f"v_cvt_pk_bf16_f32 {out2[p // 2]}, {d[p]}, {d[p + 1]}")

    kvacc, zacc = wf[1][1], wf[1][2]
    for u in range(4):
        pk, vv = xf[1][2 * u], xf[1][2 * u + 1]
        for sub in range(2):
            ms = 2 * u + sub
            d = acc[2][ms]
            for p in (0, 2):
                a(f"v_pk_fma_f32 {d[p:p + 2]}, {nm4[ms][p:p + 2]}, {cs[2][0:2]}, {d[p:p + 2]}")
            for p in (0, 2):
                a(f"v_pk_mul_f32 {d[p:p + 2]}, {d[p:p + 2]}, {rs4[ms][p:p + 2]}")
            for p in (0, 2):
                a(f"v_cvt_pk_bf16_f32 {vv[2 * sub + p // 2]}, {d[p]}, {d[p + 1]}")
            d = acc[1][ms]
            for p in (0, 2):
                a(f"v_pk_fma_f32 {d[p:p + 2]}, {nm4[ms][p:p + 2]}, {cs[1][0:2]}, {d[p:p + 2]}")
            for p in (0, 2):
                a(f"v_pk_fma_f32 {d[p:p + 2]}, {d[p:p + 2]}, {rs4[ms][p:p + 2]}, {sEps}")
            phi(d, pk[2 * sub:2 * sub + 2])
        c0 = "0" if u == 0 else kvacc
        c1 = "0" if u == 0 else zacc
        a(f"v_mfma_f32_16x16x32_bf16 {kvacc}, {pk}, {vv}, {c0}")
        a(f"v_mfma_f32_16x16x32_bf16 {zacc}, {pk}, {ones}, {c1}")
    sHead, sSlot = sT[2], sT[3]
    a(f"s_lshl_b32 {sHead}, {sC}, 2")
    a(f"s_add_u32 {sHead}, {sHead}, {sW}")
    a(f"s_lshl_b32 {sSlot}, {sHead}, 4")
    a(f"s_add_u32 {sSlot}, {sSlot}, {sR}")
    a(f"s_lshl_b32 {sT[4]}, {sSlot}, 10")
    a(f"s_add_u32 {sT[4]}, {sT[4]}, {KVP_OFF}")
    a(f"s_lshl_b32 {sT[5]}, {sSlot}, 6")
    a(f"s_add_u32 {sT[5]}, {sT[5]}, {ZP_OFF}")
    a(f"v_cmp_eq_u32 vcc, 0, {vT[0]}")
    a(f"v_mov_b32 {vT[2]}, {OOB}")
    a(f"v_cndmask_b32 {vT[2]}, {vT[2]}, {vLane}, vcc")
    a(f"buffer_store_dwordx4 {kvacc}, {vL16}, {srdWS}, {sT[4]} offen sc1")
    a(f"buffer_store_dwordx4 {zacc}, {vT[2]}, {srdWS}, {sT[5]} offen sc1")
    stamp(3)
    pq = [xf[1][ms // 2][2 * (ms & 1):2 * (ms & 1) + 2] for ms in range(8)]
    for ms in range(8):
        d = acc[0][ms]
        for p in (0, 2):
            a(f"v_pk_fma_f32 {d[p:p + 2]}, {cs[0][p:p + 2]}, {st2q[ms]}, {d[p:p + 2]} op_sel_hi:[1,0,1]")
        for p in (0, 2):
            a(f"v_pk_fma_f32 {d[p:p + 2]}, {d[p:p + 2]}, {st2q[ms]}, {sEps} op_sel:[0,1,0]")
        phi(d, pq[ms])
    a(f"s_lshl_b32 {sT[4]}, {sSlot}, 3")
    a(f"s_add_u32 {sT[4]}, {sT[4]}, {FLK_OFF}")
    flag_store(sT[4], vtag)
    stamp(4)
    a(f"s_lshl_b32 {sT[4]}, {sHead}, 7")
    a(f"s_add_u32 {sT[4]}, {sT[4]}, {FLK_OFF}")
    a(f"v_lshlrev_b32 {vT[2]}, 3, {vT[0]}")
    poll(vT[2], sT[4], vB1[0], srdWS)
    stamp(5)
    part = acc[1] + acc[2]
    a(f"s_lshl_b32 {sT[4]}, {sHead}, 14")
    a(f"s_add_u32 {sT[4]}, {sT[4]}, {KVP_OFF}")
    a(f"s_lshl_b32 {sT[5]}, {sHead}, 10")
    a(f"s_add_u32 {sT[5]}, {sT[5]}, {ZP_OFF}")
    a(f"v_lshlrev_b32 {vT[2]}, 6, {vT[0]}")
    a(f"v_lshl_add_u32 {vT[2]}, {vT[1]}, 4, {vT[2]}")
    a(f"buffer_load_dwordx4 {zacc}, {vT[2]}, {srdWS}, {sT[5]} offen sc1")
    for i in range(16):
        a(f"buffer_load_dwordx4 {part[i]}, {vL16}, {srdWS}, {sT[4]} offen offset:{(i & 3) * 1024} sc1")
        if i & 3 == 3 and i < 15:
            a(f"s_add_u32 {sT[4]}, {sT[4]}, 4096")
    a("s_waitcnt vmcnt(16)")
    for sh in (8, 4, 2, 1):
        for i in range(4):
            a(f"v_add_f32_dpp {zacc[i]}, {zacc[i]}, {zacc[i]} row_ror:{sh} row_mask:0xf bank_mask:0xf")
    zb, kvb = tmp[0:2], tmp[2:4]
    a(f"v_cvt_pk_bf16_f32 {zb[0]}, {zacc[0]}, {zacc[1]}")
    a(f"v_cvt_pk_bf16_f32 {zb[1]}, {zacc[2]}, {zacc[3]}")
    den = ex
    for ms in range(8):
        a(f"v_mfma_f32_16x16x16_bf16 {den[ms]}, {zb}, {pq[ms]}, 0")
    for ms in range(8):
        a(f"v_add_f32 {den[ms][0]}, {sEps[0]}, {den[ms][0]}")
    for ms in range(8):
        a(f"v_rcp_f32 {den[ms][0]}, {den[ms][0]}")
    for i in range(2, 16, 2):
        a(f"s_waitcnt vmcnt({14 - i})")
        for k in range(2):
            for p in (0, 2):
                a(f"v_pk_add_f32 {part[k][p:p + 2]}, {part[k][p:p + 2]}, {part[i + k][p:p + 2]}")
    for p in (0, 2):
        a(f"v_pk_add_f32 {part[0][p:p + 2]}, {part[0][p:p + 2]}, {part[1][p:p + 2]}")
    a(f"v_cvt_pk_bf16_f32 {kvb[0]}, {part[0][0]}, {part[0][1]}")
    a(f"v_cvt_pk_bf16_f32 {kvb[1]}, {part[0][2]}, {part[0][3]}")
    stamp(6)
    num = acc[0]
    for ms in range(8):
        a(f"v_mfma_f32_16x16x16_bf16 {num[ms]}, {kvb}, {pq[ms]}, 0")
    a(f"s_mul_i32 {sT[4]}, {sR}, {2 * NKS}")
    a(f"s_add_u32 {sT[4]}, {sT[4]}, {sHead}")
    a(f"s_add_u32 {sT[4]}, {sT[4]}, 86")
    a(f"s_lshl_b32 {sT[4]}, {sT[4]}, 11")
    a(f"s_add_u32 {sT[5]}, {sT[4]}, {NKS * 2048}")
    for u in range(4):
        q = xf[0][u]
        for sub in range(2):
            ms = 2 * u + sub
            d = num[ms]
            for p in (0, 2):
                a(f"v_pk_mul_f32 {d[p:p + 2]}, {d[p:p + 2]}, {den[ms][0:2]} op_sel_hi:[1,0]")
            for p in (0, 2):
                a(f"v_cvt_pk_bf16_f32 {q[2 * sub + p // 2]}, {d[p]}, {d[p + 1]}")
        frag_store(q, sT[4], sT[5], u)
    a(f"s_lshl_b32 {sT[4]}, {sR}, 6")
    a(f"s_add_u32 {sT[4]}, {sT[4]}, {sHead}")
    a(f"s_lshl_b32 {sT[4]}, {sT[4]}, 3")
    a(f"s_add_u32 {sT[4]}, {sT[4]}, {FLA_OFF}")
    stamp(7)
    flag_store(sT[4], vtag)
    stamp(8)
    write_stamps(vT)
    a("s_endpgm")
    highA = V.high

    a.label("L_B")
    V = Alloc("v", 2, 256)
    vT = [V() for _ in range(6)]
    vx = [V(), V()]
    vw = [V() for _ in range(6)]
    vSa = V()
    sum_ = V(4)
    sq_ = V(4)
    xs = [V(4) for _ in range(4)]
    vtag = V(2)
    vOnesB = V()
    sRS, sBS, sKc, sSx, sSw, sM0x, sM0w, sCol, sRow = sT[0], sT[1], sAdv, sEps[0], sEps[1], sL2e[0], sL2e[1], S(), S()
    sSlotB = S()
    vm = VmCount(a)
    a(f"s_cmp_eq_u32 {sTy}, 0")
    a(f"s_movk_i32 {sRS}, 2752")
    a(f"s_movk_i32 {sBS}, 128")
    a(f"s_cselect_b32 {sRS}, 3072, {sRS}")
    a(f"s_cselect_b32 {sBS}, 1024, {sBS}")
    a(f"s_cselect_b32 {sNt}, 12, {sNt}")
    a(f"s_lshl_b32 {sT[2]}, {sC}, 7")
    a(f"s_lshl_b32 {sT[3]}, {sT0}, 5")
    a(f"s_cmp_eq_u32 {sTy}, 0")
    a(f"s_cselect_b32 {sCol}, {sT[2]}, {sT[3]}")
    a(f"v_lshrrev_b32 {vT[0]}, 3, {vLane}")
    a(f"v_and_b32 {vT[1]}, 7, {vLane}")
    a(f"v_lshrrev_b32 {vT[2]}, 4, {vLane}")
    a(f"v_xor_b32 {vT[2]}, {vT[2]}, {vT[1]}")
    a(f"v_lshlrev_b32 {vT[2]}, 4, {vT[2]}")
    a(f"v_lshl_add_u32 {vx[0]}, {vT[0]}, 10, {vT[2]}")
    a(f"v_xor_b32 {vx[1]}, 64, {vx[0]}")
    a(f"v_add_u32 {vx[1]}, 8192, {vx[1]}")
    for i in range(6):
        a(f"v_add_u32 {vT[2]}, {8 * i}, {vT[0]}")
        a(f"v_mul_u32_u24 {vT[3]}, 43, {vT[2]}")
        a(f"v_lshrrev_b32 {vT[3]}, 7, {vT[3]}")
        a(f"v_mad_i32_i24 {vT[2]}, {vT[3]}, -3, {vT[2]}")
        a(f"v_and_b32 {vT[4]}, 2, {vT[3]}")
        if i >= 3:
            a(f"v_or_b32 {vT[4]}, 4, {vT[4]}")
        a(f"v_xor_b32 {vT[4]}, {vT[4]}, {vT[1]}")
        a(f"v_mul_u32_u24 {vT[3]}, {sRS}, {vT[3]}")
        a(f"v_mad_u32_u24 {vT[3]}, {vT[2]}, {sBS}, {vT[3]}")
        a(f"v_lshl_add_u32 {vT[3]}, {vT[4]}, 4, {vT[3]}")
        a(f"v_lshrrev_b32 {vT[4]}, 1, {vT[4]}")
        a(f"v_lshl_add_u32 {vT[4]}, {vT[2]}, 2, {vT[4]}")
        a(f"v_cmp_gt_u32 vcc, {sNt}, {vT[4]}")
        a(f"v_mov_b32 {vT[5]}, {OOB}")
        a(f"v_cndmask_b32 {vw[i]}, {vT[5]}, {vT[3]}, vcc")
    if ROT:
        a(f"s_and_b32 {sT[2]}, {sJ}, 7")
        a(f"s_lshr_b32 {sT[3]}, {sJ}, 3")
        a(f"s_lshl_b32 {sT[3]}, {sT[3]}, 1")
        a(f"s_add_u32 {sKc}, {sT[2]}, {sT[3]}")
        a(f"s_lshr_b32 {sT[3]}, {sXcd}, 1")
        a(f"s_add_u32 {sKc}, {sKc}, {sT[3]}")
        a(f"s_and_b32 {sKc}, {sKc}, 7")
    else:
        a(f"s_mov_b32 {sKc}, 0")
    a(f"s_lshl_b32 {sRow}, {sR}, 2")
    a(f"s_add_u32 {sRow}, {sRow}, {sW}")
    a(f"s_lshl_b32 {sRow}, {sRow}, 15")
    a(f"s_mul_i32 {sT[2]}, {sW}, {sRS}")
    a(f"s_lshl_b32 {sT[2]}, {sT[2]}, 4")
    a(f"s_add_u32 {sCol}, {sCol}, {sT[2]}")
    a(f"s_lshl_b32 {sRS}, {sRS}, 6")
    a(f"s_lshl_b32 {sM0x}, {sW}, 12")
    a(f"s_mul_i32 {sM0w}, {sW}, 6144")
    a(f"s_add_u32 {sM0w}, {sM0w}, {WPART}")
    a(f"s_mov_b32 {sSlotB}, 0")
    a("s_waitcnt lgkmcnt(0)")
    srdX, srdW = srdA, srdB
    srd(srdX, sX, 2048 * 1024)
    a(f"s_cmp_eq_u32 {sTy}, 0")
    a(f"s_cselect_b32 {srdW[0]}, {sWQKV[0]}, {sW1[0]}")
    a(f"s_cselect_b32 {srdW[1]}, {sWQKV[1]}, {sW1[1]}")
    a(f"s_lshl_b32 {srdW[2]}, {sRS}, 3")
    a(f"s_mov_b32 {srdW[3]}, 0x20000")
    LDF = opt.get("ldflags", "")

    def chunk_ops(tag):
        g = []
        pre = [f"s_lshl_b32 {sSx}, {sKc}, 7", f"s_add_u32 {sSx}, {sSx}, {sRow}",
               f"s_mul_i32 {sSw}, {sKc}, {sRS}", f"s_add_u32 {sSw}, {sSw}, {sCol}",
               f"s_add_u32 {sKc}, {sKc}, 1", f"s_and_b32 {sKc}, {sKc}, 7",
               f"s_add_u32 m0, {sM0x}, {sSlotB}"]
        for i in range(4):
            x = pre if i == 0 else ["s_addk_i32 m0, 0x400"]
            if i == 2:
                x = x + [f"s_add_u32 {sSx}, {sSx}, 16384"]
            g.append(x + [f"buffer_load_dwordx4 {vx[i & 1]}, {srdX}, {sSx} offen {LDF} lds"])
        for i in range(6):
            x = [f"s_add_u32 m0, {sM0w}, {sSlotB}"] if i == 0 else ["s_addk_i32 m0, 0x400"]
            g.append(x + [f"buffer_load_dwordx4 {vw[i]}, {srdW}, {sSw} offen {LDF} lds"])
        g[-1] += [f"s_add_u32 {sSlotB}, {sSlotB}, {SLOT}", f"s_cmp_eq_u32 {sSlotB}, {3 * SLOT}",
                  f"s_cselect_b32 {sSlotB}, 0, {sSlotB}"]
        return g

    def emit_groups(groups, fill, tag, first_wait=None):
        fill = list(fill)
        per = (len(fill) + max(1, len(groups) - 2) - 1) // max(1, len(groups) - 2)
        for gi, g in enumerate(groups):
            for x in g:
                a(x)
            vm.issue(tag)
            if gi == 1 and first_wait:
                a(first_wait)
            if gi >= 1:
                for _ in range(per):
                    if fill:
                        a(fill.pop(0))
        for x in fill:
            a(x)

    emit_groups(chunk_ops(0), [], "c0")
    emit_groups(chunk_ops(1), [], "c1")
    stamp(1)
    srd(srdWS, sWS, WS_USED)
    srd(srdC, sW2, 1376 * 1024)
    srd(srdD, sDBG, 256)
    a(f"v_mov_b64 {sum_[0:2]}, 0")
    a(f"v_mov_b64 {sum_[2:4]}, 0")
    a(f"v_mov_b64 {sq_[0:2]}, 0")
    a(f"v_mov_b64 {sq_[2:4]}, 0")
    a(f"v_mov_b32 {vOnesB}, 0x3f803f80")
    vL16 = V()
    a(f"v_lshlrev_b32 {vL16}, 4, {vLane}")
    a(f"v_add_u32 {vSa}, {sM0x}, {vL16}")
    vW2 = V()
    a(f"v_and_b32 {vT[2]}, 2, {vT[0]}")
    a(f"v_lshlrev_b32 {vT[2]}, 1, {vT[2]}")
    a(f"v_xor_b32 {vT[2]}, {vT[2]}, {vT[1]}")
    a(f"v_lshlrev_b32 {vT[2]}, 4, {vT[2]}")
    a(f"v_lshl_add_u32 {vW2}, {vT[0]}, 10, {vT[2]}")
    vWr = [[V(), V()], [V(), V()]]
    sQ = S()
    a(f"s_mul_i32 {sQ}, {sW}, {QUART}")
    a(f"v_bfe_u32 {vT[2]}, {vLane}, 2, 2")
    a(f"v_lshrrev_b32 {vT[3]}, 5, {vLane}")
    a(f"v_lshl_add_u32 {vT[2]}, {vT[3]}, 3, {vT[2]}")
    a(f"v_lshlrev_b32 {vT[2]}, 7, {vT[2]}")
    a(f"v_bfe_u32 {vT[3]}, {vLane}, 4, 1")
    a(f"v_lshl_add_u32 {vT[2]}, {vT[3]}, 5, {vT[2]}")
    a(f"v_bfe_u32 {vT[3]}, {vLane}, 3, 1")
    a(f"v_lshl_add_u32 {vT[2]}, {vT[3]}, 6, {vT[2]}")
    a(f"v_and_b32 {vT[3]}, 3, {vLane}")
    a(f"v_lshl_add_u32 {vT[2]}, {vT[3]}, 3, {vT[2]}")
    a(f"v_add_u32 {vWr[0][0]}, {sQ}, {vT[2]}")
    a(f"v_xor_b32 {vWr[0][1]}, 64, {vWr[0][0]}")
    a(f"v_add_u32 {vWr[1][0]}, {2 * SLOT}, {vWr[0][0]}")
    a(f"v_add_u32 {vWr[1][1]}, {2 * SLOT}, {vWr[0][1]}")
    acc2 = [V(16) for _ in range(4)]
    for t in acc2:
        for i in range(0, 16, 2):
            a(f"v_mov_b64 {t[i:i + 2]}, 0")
    sRt, sCt, sWoff, sAoff = S(), S(), S(), S()
    a(f"s_lshr_b32 {sRt}, {sJ}, 3")
    a(f"s_lshl_b32 {sT[2]}, {sXcd}, 2")
    a(f"s_add_u32 {sRt}, {sRt}, {sT[2]}")
    a(f"s_and_b32 {sCt}, {sJ}, 7")
    a(f"s_lshl_b32 {sCt}, {sCt}, 7")
    a(f"s_mul_i32 {sWoff}, {sW}, {22 * 16384}")
    a(f"s_add_u32 {sWoff}, {sWoff}, {sCt}")

    stat_reads = [f"ds_read_b128 {xs[i]}, {vSa} offset:{1024 * i}" for i in range(4)]
    dots = []
    for k in range(4):
        for i in range(4):
            dots.append(f"v_dot2c_f32_bf16 {sum_[i]}, {xs[i][k]}, {vOnesB}")
        for i in range(4):
            dots.append(f"v_dot2c_f32_bf16 {sq_[i]}, {xs[i][k]}, {xs[i][k]}")
    sSl2 = sT[3]

    def adv_stat():
        a(f"s_add_u32 {sSl2}, {sSl2}, 1")
        a(f"s_cmp_eq_u32 {sSl2}, 3")
        a(f"s_cselect_b32 {sSl2}, 0, {sSl2}")
        a(f"s_cselect_b32 {sT[2]}, {(-2 * SLOT) & 0xffffffff}, {sT[4]}")
        a(f"v_add_u32 {vSa}, {sT[2]}, {vSa}")

    a(f"s_mov_b32 {sSl2}, 0")
    a(f"s_mov_b32 {sT[4]}, {SLOT}")
    a(f"s_mov_b32 {sCnt}, 0")
    a.label("L_Bloop")
    a("s_waitcnt vmcnt(10)")
    a("s_barrier")
    for r in stat_reads:
        a(r)
    adv_stat()
    if opt.get("x_nodma"):
        a("s_waitcnt lgkmcnt(0)")
        for d_ in ([] if opt.get("x_nodot") else dots): a(d_)
    else:
        emit_groups(chunk_ops(2), [] if opt.get("x_nodot") else dots, "cl", "s_waitcnt lgkmcnt(0)")
    a(f"s_add_u32 {sCnt}, {sCnt}, 1")
    a(f"s_cmp_lt_u32 {sCnt}, 6")
    a("s_cbranch_scc1 L_Bloop")
    vm.issued = ["c6"] * 10 + ["c7"] * 10
    vm.done = 0

    cellslot = [3] * 4 + [2] * 5 + [0] * 5 + [1] * 5
    cellidx = list(range(4)) + list(range(5)) * 3

    def cell_off(s):
        c = s % 19
        return cellslot[c] * SLOT + cellidx[c] * 2048

    def w2_groups(s):
        pre = []
        if s == 22:
            pre = [f"s_mov_b32 {srdC[0]}, {sWO[0]}", f"s_mov_b32 {srdC[1]}, {sWO[1]}", f"s_mov_b32 {srdC[2]}, {512 * 1024}",
                   f"s_lshl_b32 {sWoff}, {sW}, 17", f"s_add_u32 {sWoff}, {sWoff}, {sCt}"]
        ld = f"buffer_load_dwordx4 {vW2}, {srdC}, {sWoff} offen {LDF} lds"
        adv = f"s_add_u32 {sWoff}, {sWoff}, 8192"
        return [pre + [f"s_add_u32 m0, {sQ}, {cell_off(s)}", ld, adv], ["s_addk_i32 m0, 0x400", ld, adv]]

    vm.wait("c6")
    a("s_barrier")
    for r in stat_reads:
        a(r)
    adv_stat()
    a(f"v_mov_b32 {vT[2]}, 0")
    a(f"buffer_load_dwordx2 {vtag}, {vT[2]}, {srdD}, 0 offen sc1")
    vm.issue("tag")
    emit_groups(sum((w2_groups(s) for s in range(0, 4)), []), dots, "p0", "s_waitcnt lgkmcnt(0)")
    vm.wait("tag")
    a("s_barrier")
    stamp(2)
    for r in stat_reads:
        a(r)
    a(f"v_cmp_ne_u64 vcc, 0, {vtag}")
    a("s_cmp_eq_u64 vcc, exec")
    a("s_cbranch_scc1 L_tagok")
    poll(vT[2], 0, vtag, srdD, nonzero=True)
    a.label("L_tagok")
    a(f"v_readfirstlane_b32 {sTag[0]}, {vtag[0]}")
    a(f"v_readfirstlane_b32 {sTag[1]}, {vtag[1]}")
    fin = list(dots)
    fin += ["s_nop 2"]
    for mode in ("quad_perm:[1,0,3,2]", "quad_perm:[2,3,0,1]", "row_half_mirror"):
        for t in (sum_, sq_):
            for i in range(4):
                fin.append(f"v_add_f32_dpp {t[i]}, {t[i]}, {t[i]} {mode} row_mask:0xf bank_mask:0xf")
    m_, q_ = xs[0][0], xs[0][1]
    st = xs[1]
    fin += [f"v_and_b32 {vT[3]}, 3, {vLane}",
            f"v_mov_b32 {m_}, {sum_[0]}", f"v_mov_b32 {q_}, {sq_[0]}"]
    for i in range(1, 4):
        fin += [f"v_cmp_eq_u32 vcc, {i}, {vT[3]}",
                f"s_nop 1",
                f"v_cndmask_b32 {m_}, {m_}, {sum_[i]}, vcc", f"v_cndmask_b32 {q_}, {q_}, {sq_[i]}, vcc"]
    fin += [f"v_mul_f32 {m_}, 0x3b000000, {m_}",
            f"v_mul_f32 {q_}, 0x3b000000, {q_}",
            f"v_fma_f32 {q_}, -{m_}, {m_}, {q_}",
            f"v_max_f32 {q_}, 0, {q_}",
            f"v_cvt_pk_bf16_f32 {m_}, {q_}, {m_}",
            f"v_lshlrev_b32 {q_}, 16, {m_}",
            f"v_and_b32 {m_}, 0xffff0000, {m_}",
            f"v_add_f32 {q_}, 0x3727c5ac, {q_}",
            f"v_cvt_pk_bf16_f32 {q_}, {q_}, {q_}",
            f"v_and_b32 {q_}, 0xffff0000, {q_}",
            f"v_sqrt_f32 {q_}, {q_}",
            f"v_xor_b32 {st[0]}, 0x80000000, {m_}",
            f"v_cvt_pk_bf16_f32 {q_}, {q_}, {q_}",
            f"v_and_b32 {q_}, 0xffff0000, {q_}",
            f"v_rcp_f32 {st[1]}, {q_}",
            f"v_lshl_add_u32 {vT[3]}, {vT[3]}, 3, {vT[0]}",
            f"s_lshl_b32 {sT[2]}, {sW}, 5",
            f"v_add_u32 {vT[3]}, {sT[2]}, {vT[3]}",
            f"v_lshlrev_b32 {vT[4]}, 3, {vT[3]}",
            f"v_lshlrev_b32 {vT[3]}, 2, {vT[3]}",
            f"v_add_u32 {vT[4]}, {STAT2}, {vT[4]}",
            f"v_add_u32 {vT[3]}, {NMEAN}, {vT[3]}",
            f"v_mov_b32 {vT[5]}, {TAGL}",
            f"ds_write_b64 {vT[4]}, {st[0:2]}",
            f"ds_write2_b32 {vT[3]}, {st[0]}, {st[1]} offset1:128",
            f"ds_write_b64 {vT[5]}, {vtag}"]
    emit_groups(sum((w2_groups(s) for s in range(4, 9)), []), fin, "p1", "s_waitcnt lgkmcnt(0)")
    a("s_waitcnt lgkmcnt(0)")
    a("s_barrier")
    stamp(3)
    emit_groups(sum((w2_groups(s) for s in range(9, 19)), []), [], "p2")
    xres = [V(4), V(4)]
    b2r = V(4)
    vOut = V()
    srd(srdB, sB2, 1024)
    a(f"v_lshlrev_b32 {vT[2]}, 4, {vT[1]}")
    a(f"v_lshl_add_u32 {vOut}, {vT[0]}, 10, {vT[2]}")
    sOo = S()
    a(f"s_lshl_b32 {sOo}, {sRt}, 2")
    a(f"s_add_u32 {sOo}, {sOo}, {sW}")
    a(f"s_lshl_b32 {sOo}, {sOo}, 14")
    a(f"s_add_u32 {sOo}, {sOo}, {sCt}")
    a(f"s_add_u32 {sT[5]}, {sOo}, 8192")
    a(f"buffer_load_dwordx4 {xres[0]}, {vOut}, {srdX}, {sOo} offen")
    a(f"buffer_load_dwordx4 {xres[1]}, {vOut}, {srdX}, {sT[5]} offen")
    a(f"buffer_load_dwordx4 {b2r}, {vT[2]}, {srdB}, {sCt} offen")
    srd(srdD, sOUT, 2048 * 1024)
    stamp(4)
    sFl = S()
    vFl = V()
    a(f"s_lshr_b32 {sFl}, {sRt}, 1")
    a(f"s_lshl_b32 {sFl}, {sFl}, 3")
    a(f"s_add_u32 {sFl}, {sFl}, {sW}")
    a(f"s_lshl_b32 {sFl}, {sFl}, 6")
    a(f"s_add_u32 {sFl}, {sFl}, {FLA_OFF}")
    a(f"v_lshlrev_b32 {vFl}, 3, {vT[1]}")
    a(f"s_mul_i32 {sAoff}, {sRt}, {NKS}")
    a(f"s_mul_i32 {sT[2]}, {sW}, 22")
    a(f"s_add_u32 {sAoff}, {sAoff}, {sT[2]}")
    a(f"s_lshl_b32 {sAoff}, {sAoff}, 11")
    poll(vFl, sFl, vtag, srdWS, imm=256)
    vm.issued, vm.done = [], 0
    stamp(5)
    af = [[V(4), V(4)] for _ in range(DA)]
    w2f = [[V(4), V(4)] for _ in range(2)]

    def a_load(s):
        if s >= 30:
            return
        if s == 20:
            a(f"s_cmp_eq_u32 {sW}, 3")
            a(f"s_cselect_b32 {sAoff}, {OOB}, {sAoff}")
        if s == 22:
            stamp(6)
            poll(vFl, sFl, vtag, srdWS, imm=0)
            stamp(7)
            vm.done = len(vm.issued)
            a(f"s_mul_i32 {sAoff}, {sRt}, {NKS}")
            a(f"s_lshl_b32 {sT[2]}, {sW}, 3")
            a(f"s_add_u32 {sAoff}, {sAoff}, {sT[2]}")
            a(f"s_add_u32 {sAoff}, {sAoff}, 86")
            a(f"s_lshl_b32 {sAoff}, {sAoff}, 11")
        for mt in range(2):
            a(f"buffer_load_dwordx4 {af[s % DA][mt]}, {vL16}, {srdWS}, {sAoff} offen offset:{1024 * mt} sc1")
            vm.issue(f"a{s}")
        a(f"s_add_u32 {sAoff}, {sAoff}, 2048")

    def w_reads(s):
        off = cell_off(s)
        hi = off >= 2 * SLOT
        off -= 2 * SLOT * hi
        return [f"ds_read_b64_tr_b16 {w2f[s & 1][nt][2 * hf:2 * hf + 2]}, {vWr[hi][nt]} offset:{off + 512 * hf}"
                for nt in range(2) for hf in range(2)]

    for s in range(DA):
        a_load(s)
    for r in w_reads(0):
        a(r)
    for s in range(30):
        vm.wait(f"a{s}", "lgkmcnt(0)")
        if s + 1 >= 19 and s + 1 < 30:
            vm.wait(f"w{s + 1}")
        mf = [f"v_mfma_f32_32x32x16_bf16 {acc2[nt + 2 * mt]}, {w2f[s & 1][nt]}, {af[s % DA][mt]}, {acc2[nt + 2 * mt]}"
              for mt in range(2) for nt in range(2)]
        interleave(mf, w_reads(s + 1) if s + 1 < 30 else [])
        a_load(s + DA)
        if s + 19 < 30:
            for g in w2_groups(s + 19):
                for x in g:
                    a(x)
                vm.issue(f"w{s + 19}")
    stamp(8)
    a(f"v_and_b32 {vT[2]}, 31, {vLane}")
    a(f"v_bfe_u32 {vT[3]}, {vLane}, 1, 2")
    a(f"v_and_b32 {vT[4]}, 1, {vLane}")
    a(f"v_lshl_or_b32 {vT[3]}, {vT[4]}, 2, {vT[3]}")
    a(f"v_lshrrev_b32 {vT[4]}, 5, {vLane}")
    a(f"v_xor_b32 {vT[3]}, {vT[3]}, {vT[4]}")
    a(f"v_lshlrev_b32 {vT[3]}, 4, {vT[3]}")
    a(f"v_lshl_add_u32 {vT[2]}, {vT[2]}, 7, {vT[3]}")
    wa = [[V() for g in range(4)] for hi in range(2)]
    a(f"v_add_u32 {wa[0][0]}, {sQ}, {vT[2]}")
    for g in range(1, 4):
        a(f"v_xor_b32 {wa[0][g]}, {32 * g}, {wa[0][0]}")
    for g in range(4):
        a(f"v_add_u32 {wa[1][g]}, {2 * SLOT}, {wa[0][g]}")
    for i in range(4):
        for g in range(4):
            a(f"ds_write_b128 {wa[i >> 1][g]}, {acc2[i][4 * g:4 * g + 4]} offset:{(i & 1) * SLOT}")
    a(f"s_lshr_b32 {sT[2]}, {sW}, 1")
    a(f"s_mul_i32 {sT[2]}, {sT[2]}, {2 * SLOT}")
    a(f"s_and_b32 {sT[3]}, {sW}, 1")
    a(f"s_lshl_b32 {sT[3]}, {sT[3]}, 11")
    a(f"s_add_u32 {sT[2]}, {sT[2]}, {sT[3]}")
    a(f"v_bfe_u32 {vT[2]}, {vLane}, 2, 1")
    a(f"v_mul_u32_u24 {vT[2]}, {SLOT}, {vT[2]}")
    a(f"v_lshl_add_u32 {vT[2]}, {vT[0]}, 7, {vT[2]}")
    a(f"v_bfe_u32 {vT[3]}, {vLane}, 4, 2")
    a(f"v_bfe_u32 {vT[4]}, {vLane}, 3, 1")
    a(f"v_lshl_or_b32 {vT[3]}, {vT[4]}, 2, {vT[3]}")
    a(f"v_and_b32 {vT[4]}, 3, {vLane}")
    a(f"v_lshlrev_b32 {vT[4]}, 1, {vT[4]}")
    a(f"v_xor_b32 {vT[3]}, {vT[3]}, {vT[4]}")
    a(f"v_lshl_add_u32 {vT[2]}, {vT[3]}, 4, {vT[2]}")
    a(f"v_add_u32 {vT[2]}, {sT[2]}, {vT[2]}")
    a(f"v_xor_b32 {vT[3]}, 16, {vT[2]}")
    ad = [V(8), V(8)]
    bb = V(8)
    for i in range(4):
        a(f"v_lshlrev_b32 {bb[2 * i]}, 16, {b2r[i]}")
        a(f"v_and_b32 {bb[2 * i + 1]}, 0xffff0000, {b2r[i]}")
    for ps in range(2):
        for i in range(4):
            a(f"v_lshlrev_b32 {ad[ps][2 * i]}, 16, {xres[ps][i]}")
            a(f"v_and_b32 {ad[ps][2 * i + 1]}, 0xffff0000, {xres[ps][i]}")
        for i in range(0, 8, 2):
            a(f"v_pk_add_f32 {ad[ps][i:i + 2]}, {ad[ps][i:i + 2]}, {bb[i:i + 2]}")
    a("s_waitcnt lgkmcnt(0)")
    a("s_barrier")
    for ps in range(2):
        for src in range(4):
            for k in range(2):
                a(f"ds_read_b128 {acc2[src][8 * ps + 4 * k:8 * ps + 4 * k + 4]}, {vT[2 + k]} offset:{src * QUART + ps * 1024}")
    for ps in range(2):
        for src in range(4):
            a(f"s_waitcnt lgkmcnt({14 - 8 * ps - 2 * src})")
            for i in range(0, 8, 2):
                a(f"v_pk_add_f32 {ad[ps][i:i + 2]}, {ad[ps][i:i + 2]}, {acc2[src][8 * ps + i:8 * ps + i + 2]}")
        for i in range(4):
            a(f"v_cvt_pk_bf16_f32 {xres[ps][i]}, {ad[ps][2 * i]}, {ad[ps][2 * i + 1]}")
        a(f"buffer_store_dwordx4 {xres[ps]}, {vOut}, {srdD}, {sOo if ps == 0 else sT[5]} offen {opt.get('outflags', '')}")
    stamp(9)
    if "amp" in opt:
        k = opt["amp"]
        a("s_waitcnt lgkmcnt(0)")
        a(f"s_sub_u32 {sT[0]}, {sStamp[k][0]}, {sStamp[opt.get('amp0', 0)][0]}")
        a(f"s_mul_i32 {sT[0]}, {sT[0]}, 10")
        a(f"s_min_u32 {sT[0]}, {sT[0]}, 100000")
        a.label("L_amp")
        a(f"s_memrealtime {sStamp[1]}")
        a("s_waitcnt lgkmcnt(0)")
        a(f"s_sub_u32 {sT[1]}, {sStamp[1][0]}, {sStamp[9][0]}")
        a(f"s_cmp_lt_u32 {sT[1]}, {sT[0]}")
        a("s_cbranch_scc1 L_amp")
    else:
        write_stamps(vT)
    a.label("L_end")
    a("s_endpgm")
    body = a.finish(verbose=opt.get("verbose", False))
    if opt.get("verbose"):
        print("vgpr A", highA, "B", V.high, "sgpr", S.high)

    ref = open(os.path.join(os.path.dirname(os.path.abspath(__file__)), "header.txt")).read()
    txt = ref + f"; @launch grid=(256,1,1) block=(512,1,1) lds={LDS_BYTES}\n"
    txt += f""".amdgcn_target "amdgcn-amd-amdhsa--gfx950"
.text
.globl {KERN}
.p2align 8
.type {KERN},@function
{KERN}:
{body}.section .rodata,"a"
.p2align 6
.amdhsa_kernel {KERN}
  .amdhsa_next_free_vgpr 256
  .amdhsa_next_free_sgpr 102
  .amdhsa_accum_offset 256
  .amdhsa_group_segment_fixed_size 0
  .amdhsa_kernarg_size 88
  .amdhsa_user_sgpr_count 2
  .amdhsa_user_sgpr_kernarg_segment_ptr 1
  .amdhsa_system_sgpr_workgroup_id_x 1
  .amdhsa_float_denorm_mode_32 3
.end_amdhsa_kernel
"""
    return txt


if __name__ == "__main__":
    import json
    opt = json.loads(sys.argv[2]) if len(sys.argv) > 2 else {}
    opt.setdefault("verbose", True)
    out = sys.argv[1] if len(sys.argv) > 1 else f"cdna_kernels/{NAME}.s"
    open(out, "w").write(gen(opt))
```

```python
import sys, os
sys.path.insert(0, os.path.dirname(os.path.abspath(__file__)))
from asmlib import Asm, Alloc, R, VmCount

NAME = "parallel_sum__linear_attn_block__dense_activation_squared_relu__prompt"
KERN = NAME + "_kernel"

NKS = 118
A2_OFF = 0
A2_SIZE = 32 * NKS * 2048
KVP_OFF = 0x780000
ZP_OFF = KVP_OFF + 32 * 16 * 1024
FLA_OFF = ZP_OFF + 32 * 16 * 64
FLK_OFF = FLA_OFF + 16 * 512
EPO_OFF = FLK_OFF + 32 * 128
WS_USED = EPO_OFF + 128
STAMP_OFF = 0x900000
assert A2_SIZE <= KVP_OFF and WS_USED <= STAMP_OFF
OOB = 0x40000000

SLOT = 40960
QUART = 10240
WPART = 16384
STAT2 = 3 * SLOT + 8192
NMEAN = STAT2 + 1024
RSTD = NMEAN + 512
TAGL = 3 * SLOT + QUART + 8192
LDS_BYTES = 4 * SLOT

POLL_CAP = 1 << 15


def gen(opt):
    stamps = opt.get("stamps", False)
    DA = opt.get("DA", 4)
    ROT = opt.get("rot", 1)
    a = Asm()
    S = Alloc("s", 26, 102)
    sX, sWQKV, sWO, sW1, sB1, sW2, sB2 = (R("s", i, 2) for i in (4, 6, 8, 12, 14, 16, 18))
    sOUT, sDBG, sWS = R("s", 20, 2), R("s", 22, 2), R("s", 24, 2)
    sTag = S(2)
    srdA, srdB, srdC, srdD, srdWS = S(4), S(4), S(4), S(4), S(4)
    sWave, sW, sJ, sXcd, sR, sC, sTy, sT0, sNt = (S() for _ in range(9))
    sT = [S() for _ in range(8)]
    sCnt = S()
    sStamp = [S(2) for _ in range(10)] if stamps else None
    nstamp = [0]

    def stamp(i):
        if stamps:
            a(f"{'s_memtime' if opt.get('cyc') else 's_memrealtime'} {sStamp[i]} ; s_memrealtime")

    def srd(dst, ptr, size):
        a(f"s_mov_b32 {dst[0]}, {ptr[0]}")
        a(f"s_mov_b32 {dst[1]}, {ptr[1]}")
        a(f"s_mov_b32 {dst[2]}, {size}")
        a(f"s_mov_b32 {dst[3]}, 0x20000")

    def write_stamps(vt):
        if not stamps or "amp" in opt:
            return
        a("s_waitcnt vmcnt(0) lgkmcnt(0)")
        a(f"s_lshl_b32 {sT[0]}, s2, 3")
        a(f"s_add_u32 {sT[0]}, {sT[0]}, {sWave}")
        a(f"s_lshl_b32 {sT[0]}, {sT[0]}, 6")
        a(f"s_add_u32 {sT[0]}, {sT[0]}, {STAMP_OFF}")
        a(f"s_mov_b32 {srdWS[2]}, {STAMP_OFF + 0x40000}")
        a(f"v_mov_b32 {vt[1]}, 0")
        a("s_mov_b64 exec, 1")
        for i in range(10):
            a(f"v_mov_b32 {vt[0]}, {sStamp[i][0]}")
            a(f"buffer_store_dword {vt[0]}, {vt[1]}, {srdWS}, {sT[0]} offen offset:{4 * i}")
        a("s_waitcnt vmcnt(0)")

    def poll(vaddr, soff, vtmp, srd_, imm=0, nonzero=False):
        L = a.uid("L_poll")
        D = a.uid("L_polldone")
        a(f"s_mov_b32 {sCnt}, 0")
        a.label(L)
        a(f"buffer_load_dwordx2 {vtmp}, {vaddr}, {srd_}, {soff} offen offset:{imm} sc1")
        a("s_waitcnt vmcnt(0)")
        if nonzero:
            a(f"v_cmp_ne_u64 vcc, 0, {vtmp}")
        else:
            a(f"v_cmp_eq_u64 vcc, {sTag}, {vtmp}")
        a("s_cmp_eq_u64 vcc, exec")
        a(f"s_cbranch_scc1 {D}")
        a(f"s_add_u32 {sCnt}, {sCnt}, 1")
        a(f"s_cmp_lt_u32 {sCnt}, {POLL_CAP}")
        a("s_sleep 1")
        a(f"s_cbranch_scc1 {L}")
        a.label(D)

    vLane = R("v", 1)
    a("s_cmp_ge_u32 s2, 0x100")
    a("s_cbranch_scc1 L_end")
    a("s_load_dwordx16 s[4:19], s[0:1], 0")
    a("s_load_dwordx4 s[20:23], s[0:1], 64")
    a("s_load_dwordx2 s[24:25], s[0:1], 80")
    if stamps:
        for i in range(10):
            a(f"s_mov_b64 {sStamp[i]}, 0")
    stamp(0)
    a("v_lshrrev_b32 v2, 6, v0")
    a(f"v_and_b32 {vLane}, 63, v0")
    a(f"v_readfirstlane_b32 {sWave}, v2")
    a(f"s_and_b32 {sXcd}, s2, 7")
    a(f"s_lshr_b32 {sJ}, s2, 3")
    if opt.get("codepf", 1):
        a(f"s_cmp_lg_u32 {sWave}, 0")
        a("s_cbranch_scc1 L_nopf")
        a(f"s_getpc_b64 {sTag}")
        a.label("L_pc")
        a(f"s_lshl_b32 {sT[0]}, {sJ}, 10")
        a(f"v_and_b32 v2, 7, v0")
        a(f"v_lshl_add_u32 v2, v2, 7, {sT[0]}")
        a("v_min_u32 v2, L_end-L_pc, v2")
        a(f"global_load_dword v255, v2, {sTag}")
        a.label("L_nopf")
    a(f"s_and_b32 {sT[0]}, {sXcd}, 1")
    a(f"s_lshl_b32 {sT[0]}, {sT[0]}, 3")
    a(f"s_and_b32 {sT[1]}, {sJ}, 7")
    a(f"s_add_u32 {sR}, {sT[0]}, {sT[1]}")
    a(f"s_lshr_b32 {sT[2]}, {sJ}, 3")
    a(f"s_lshr_b32 {sTy}, {sT[2]}, 1")
    a(f"s_and_b32 {sT[3]}, {sT[2]}, 1")
    a(f"s_and_b32 {sC}, {sXcd}, 6")
    a(f"s_add_u32 {sC}, {sC}, {sT[3]}")
    a(f"s_lshr_b32 {sT[4]}, {sXcd}, 1")
    a(f"s_mul_i32 {sT0}, {sT[4]}, 22")
    a(f"s_cmp_lt_u32 {sC}, 6")
    a(f"s_cselect_b32 {sT[5]}, 12, 10")
    a(f"s_cmp_eq_u32 {sT[3]}, 0")
    a(f"s_cselect_b32 {sNt}, {sT[5]}, 10")
    a(f"s_cselect_b32 {sT[5]}, 0, {sT[5]}")
    a(f"s_add_u32 {sT0}, {sT0}, {sT[5]}")
    a(f"s_and_b32 {sW}, {sWave}, 3")
    a(f"s_cmp_ge_u32 {sWave}, 4")
    a("s_cbranch_scc1 L_B")

    V = Alloc("v", 2, 256)
    vT = [V() for _ in range(6)]
    acc = [[V(4) for ms in range(8)] for nt in range(3)]
    cs = [V(4) for nt in range(3)]
    ones = V(4)
    vXa = [V(), V()]
    vWa = V()
    vL16 = V()
    vOne = V()
    vB1 = [V(2) for _ in range(3)]
    mFr = V.mark()
    xf = [[V(4) for ms in range(8)] for st in range(2)]
    wf = [[V(4) for nt in range(3)] for st in range(2)]
    sAdv = S()
    sEps, sL2e = S(2), S(2)

    for nt in range(3):
        for ms in range(8):
            a(f"v_mov_b64 {acc[nt][ms][0:2]}, 0")
            a(f"v_mov_b64 {acc[nt][ms][2:4]}, 0")
        a(f"v_mov_b64 {cs[nt][0:2]}, 0")
        a(f"v_mov_b64 {cs[nt][2:4]}, 0")
    for i in range(4):
        a(f"v_mov_b32 {ones[i]}, 0x3f803f80")
    a(f"v_and_b32 {vT[0]}, 15, {vLane}")
    a(f"v_lshrrev_b32 {vT[1]}, 4, {vLane}")
    a(f"v_lshrrev_b32 {vT[2]}, 1, {vT[0]}")
    a(f"v_xor_b32 {vT[2]}, {vT[2]}, {vT[1]}")
    a(f"v_lshlrev_b32 {vT[2]}, 4, {vT[2]}")
    a(f"v_lshl_add_u32 {vXa[0]}, {vT[0]}, 7, {vT[2]}")
    a(f"v_xor_b32 {vXa[1]}, 64, {vXa[0]}")
    a(f"v_bfe_u32 {vT[2]}, {vLane}, 2, 2")
    a(f"v_lshl_add_u32 {vT[3]}, {vT[1]}, 3, {vT[2]}")
    a(f"v_mul_u32_u24 {vT[3]}, 384, {vT[3]}")
    a(f"v_bfe_u32 {vT[2]}, {vLane}, 3, 2")
    a(f"v_xor_b32 {vT[2]}, {sW}, {vT[2]}")
    a(f"v_lshl_add_u32 {vT[3]}, {vT[2]}, 5, {vT[3]}")
    a(f"v_and_b32 {vT[2]}, 3, {vLane}")
    a(f"v_lshl_add_u32 {vWa}, {vT[2]}, 3, {vT[3]}")
    a(f"v_lshlrev_b32 {vL16}, 4, {vLane}")
    a(f"v_cmp_eq_u32 vcc, 0, {vLane}")
    a(f"v_mov_b32 {vT[2]}, {OOB}")
    a(f"v_cndmask_b32 {vOne}, {vT[2]}, {vLane}, vcc")
    a(f"s_mov_b32 {sEps[0]}, 0x358637bd")
    a(f"s_mov_b32 {sEps[1]}, 0x358637bd")
    a(f"s_mov_b32 {sL2e[0]}, 0x3fb8aa3b")
    a(f"s_mov_b32 {sL2e[1]}, 0x3fb8aa3b")
    a("s_waitcnt lgkmcnt(0)")
    srd(srdWS, sWS, WS_USED)
    srd(srdA, sB1, 2752)
    srd(srdB, sDBG, 256)
    a(f"s_or_b32 {sT[0]}, s2, {sWave}")
    a(f"s_cmp_lg_u32 {sT[0]}, 0")
    a("s_cbranch_scc1 L_notag")
    t2 = xf[0][0][0:2]
    a(f"s_mov_b32 {sT[0]}, {EPO_OFF}")
    a(f"buffer_load_dwordx2 {t2}, {vOne}, {srdWS}, {sT[0]} offen sc1")
    a("s_waitcnt vmcnt(0)")
    a(f"v_add_u32 {t2[0]}, 0x7f4a7c16, {t2[0]}")
    a(f"v_add_u32 {t2[1]}, 0x9e3779b9, {t2[1]}")
    a(f"v_or_b32 {t2[0]}, 1, {t2[0]}")
    a(f"buffer_store_dwordx2 {t2}, {vOne}, {srdB}, 0 offen sc1")
    a(f"buffer_store_dwordx2 {t2}, {vOne}, {srdWS}, {sT[0]} offen sc1")
    a("s_waitcnt vmcnt(0)")
    a.label("L_notag")
    a(f"s_cmp_eq_u32 {sTy}, 0")
    a("s_cbranch_scc1 L_Aq")
    a(f"v_lshlrev_b32 {vT[2]}, 3, {vT[1]}")
    a(f"s_add_u32 {sT[0]}, {sT0}, {sW}")
    a(f"s_lshl_b32 {sT[0]}, {sT[0]}, 5")
    for nt in range(3):
        a(f"buffer_load_dwordx2 {vB1[nt]}, {vT[2]}, {srdA}, {sT[0]} offen offset:{128 * nt}")

    def reads(st, kk):
        r = []
        for nt in range(3):
            for hf in range(2):
                r.append(f"ds_read_b64_tr_b16 {wf[st][nt][2 * hf:2 * hf + 2]}, {vWa} offset:{WPART + (32 * kk + 4 * hf) * 384 + nt * 128}")
        xs = [f"ds_read_b128 {xf[st][ms]}, {vXa[kk]} offset:{ms * 2048}" for ms in range(8)]
        if opt.get("x_noread"): return []
        return r[0:2] + xs[0:4] + r[2:4] + xs[4:8] + r[4:6]

    def mfmas(st, nm):
        m = []
        for nt in range(3):
            for ms in range(9):
                d = acc[nt][ms] if ms < 8 else cs[nt]
                x = xf[st][ms] if ms < 8 else ones
                A, B = (wf[st][nt], x) if nm[nt] else (x, wf[st][nt])
                m.append(f"v_mfma_f32_16x16x32_bf16 {d}, {A}, {B}, {d}")
        if opt.get("x_nomfma"): return []
        return m

    def interleave(ms_, other):
        o = list(other)
        for m in ms_:
            a(m)
            if o:
                a(o.pop(0))
        for x in o:
            a(x)

    def mainloop(tag, nm, tail_reads):
        a(f"s_mov_b32 {sCnt}, 0")
        a(f"s_mov_b32 {sT[0]}, 0")
        a("s_barrier")
        stamp(1)
        for r in reads(0, 0):
            a(r)
        a(".p2align 3")
        a.label(f"L_loop{tag}")
        a("s_waitcnt lgkmcnt(0)")
        a(f"s_add_u32 {sT[0]}, {sT[0]}, 1")
        interleave(mfmas(0, nm), reads(1, 1))
        a(f"s_cmp_eq_u32 {sT[0]}, 3")
        a(f"s_cselect_b32 {sT[0]}, 0, {sT[0]}")
        a(f"s_cselect_b32 {sAdv}, {(-2 * SLOT) & 0xffffffff}, {sT[1]}")
        a(f"s_add_u32 {sCnt}, {sCnt}, 1")
        a(f"s_cmp_eq_u32 {sCnt}, 8")
        a(f"v_add_u32 {vXa[0]}, {sAdv}, {vXa[0]}")
        a(f"v_add_u32 {vXa[1]}, {sAdv}, {vXa[1]}")
        a(f"v_add_u32 {vWa}, {sAdv}, {vWa}")
        a("s_waitcnt lgkmcnt(0)")
        a("s_barrier")
        a(f"s_cbranch_scc1 L_tail{tag}")
        interleave(mfmas(1, nm), reads(0, 0))
        a(f"s_branch L_loop{tag}")
        a(".p2align 3")
        a.label(f"L_tail{tag}")
        stamp(2)
        interleave(mfmas(1, nm), tail_reads)

    def tag_read(v2):
        a(f"v_readfirstlane_b32 {sTag[0]}, {v2[0]}")
        a(f"v_readfirstlane_b32 {sTag[1]}, {v2[1]}")

    def frag_store(q, soff_lo, soff_hi, u):
        a(f"v_permlane16_swap_b32 {q[0]}, {q[2]}")
        a(f"v_permlane16_swap_b32 {q[1]}, {q[3]}")
        so = soff_lo if u < 2 else soff_hi
        a(f"buffer_store_dwordx4 {q}, {vL16}, {srdWS}, {so} offen offset:{(u & 1) * 1024} sc1")

    def flag_store(soff, v2):
        a(f"v_mov_b32 {v2[0]}, {sTag[0]}")
        a(f"v_mov_b32 {v2[1]}, {sTag[1]}")
        a("s_waitcnt vmcnt(0)")
        a(f"buffer_store_dwordx2 {v2}, {vOne}, {srdWS}, {soff} offen sc1")

    a(f"s_mov_b32 {sT[1]}, {SLOT}")
    st2 = [xf[0][ms // 2][2 * (ms & 1):2 * (ms & 1) + 2] for ms in range(8)]
    vtag = xf[0][4][0:2]
    vSt = vT[4]
    vZero = vT[5]
    a(f"v_lshlrev_b32 {vSt}, 3, {vT[0]}")
    a(f"v_add_u32 {vSt}, {STAT2}, {vSt}")
    a(f"v_mov_b32 {vZero}, {TAGL}")
    tail = [f"ds_read_b64 {st2[ms]}, {vSt} offset:{128 * ms}" for ms in range(8)] + [f"ds_read_b64 {vtag}, {vZero}"]
    mainloop("H", [1, 1, 1], tail)
    bfp = [xf[0][5], xf[0][6], xf[0][7]]
    a("s_waitcnt vmcnt(0) lgkmcnt(0)")
    for nt in range(3):
        for i in range(2):
            a(f"v_lshlrev_b32 {bfp[nt][2 * i]}, 16, {vB1[nt][i]}")
            a(f"v_and_b32 {bfp[nt][2 * i + 1]}, 0xffff0000, {vB1[nt][i]}")
    tag_read(vtag)
    a(f"s_mul_i32 {sT[2]}, {sR}, {2 * NKS}")
    a(f"s_add_u32 {sT[2]}, {sT[2]}, {sT0}")
    a(f"s_add_u32 {sT[2]}, {sT[2]}, {sW}")
    a(f"s_lshl_b32 {sT[2]}, {sT[2]}, 11")
    a(f"s_add_u32 {sT[3]}, {sT[2]}, {NKS * 2048}")
    qs = [xf[1][i] for i in range(8)]
    qi = 0
    for nt in range(3):
        if nt == 2:
            a(f"s_add_u32 {sT[4]}, {sW}, 8")
            a(f"s_cmp_ge_u32 {sT[4]}, {sNt}")
            a("s_cbranch_scc1 L_Hdone")
        for u in range(4):
            q = qs[qi % 8]
            qi += 1
            for sub in range(2):
                ms = 2 * u + sub
                d = acc[nt][ms]
                for p in (0, 2):
                    a(f"v_pk_fma_f32 {d[p:p + 2]}, {cs[nt][p:p + 2]}, {st2[ms]}, {d[p:p + 2]} op_sel_hi:[1,0,1]")
                for p in (0, 2):
                    a(f"v_pk_fma_f32 {d[p:p + 2]}, {d[p:p + 2]}, {st2[ms]}, {bfp[nt][p:p + 2]} op_sel:[0,1,0]")
                for i in range(4):
                    a(f"v_max_f32 {d[i]}, 0, {d[i]}")
                for p in (0, 2):
                    a(f"v_pk_mul_f32 {d[p:p + 2]}, {d[p:p + 2]}, {d[p:p + 2]}")
                for p in (0, 2):
                    a(f"v_cvt_pk_bf16_f32 {q[2 * sub + p // 2]}, {d[p]}, {d[p + 1]}")
            frag_store(q, sT[2], sT[3], u)
        if nt < 2:
            a(f"s_add_u32 {sT[2]}, {sT[2]}, {4 * 2048}")
            a(f"s_add_u32 {sT[3]}, {sT[3]}, {4 * 2048}")
    a.label("L_Hdone")
    stamp(3)
    a(f"s_lshl_b32 {sT[2]}, {sR}, 4")
    a(f"s_add_u32 {sT[2]}, {sT[2]}, {sC}")
    a(f"s_lshl_b32 {sT[2]}, {sT[2]}, 2")
    a(f"s_add_u32 {sT[2]}, {sT[2]}, {sW}")
    a(f"s_lshl_b32 {sT[2]}, {sT[2]}, 3")
    a(f"s_add_u32 {sT[2]}, {sT[2]}, {FLA_OFF + 256}")
    flag_store(sT[2], vtag)
    stamp(4)
    write_stamps(vT)
    a("s_endpgm")

    a.label("L_Aq")
    a(f"s_mov_b32 {sT[1]}, {SLOT}")
    ex = [V(4) for _ in range(8)]
    nm4 = xf[0]
    rs4 = ex
    st2q = [wf[0][ms // 2][2 * (ms & 1):2 * (ms & 1) + 2] for ms in range(6)] + [vB1[0], vB1[1]]
    vtag = vB1[2]
    a(f"v_lshlrev_b32 {vSt}, 3, {vT[0]}")
    a(f"v_add_u32 {vSt}, {STAT2}, {vSt}")
    a(f"v_mov_b32 {vZero}, {TAGL}")
    a(f"v_lshlrev_b32 {vT[3]}, 4, {vT[1]}")
    a(f"v_add_u32 {vT[3]}, {NMEAN}, {vT[3]}")
    tail = []
    for ms in range(8):
        tail.append(f"ds_read_b128 {nm4[ms]}, {vT[3]} offset:{64 * ms}")
        tail.append(f"ds_read_b128 {rs4[ms]}, {vT[3]} offset:{512 + 64 * ms}")
    tail += [f"ds_read_b64 {st2q[ms]}, {vSt} offset:{128 * ms}" for ms in range(8)] + [f"ds_read_b64 {vtag}, {vZero}"]
    mainloop("Q", [1, 0, 0], tail)
    a("s_waitcnt vmcnt(0) lgkmcnt(0)")
    tag_read(vtag)
    tmp = wf[1][0]

    def phi(d, out2):
        for p in (0, 2):
            a(f"v_pk_mul_f32 {tmp[p:p + 2]}, {d[p:p + 2]}, {sL2e}")
        for i in range(4):
            a(f"v_exp_f32_e64 {tmp[i]}, {tmp[i]} clamp")
        for i in range(4):
            a(f"v_max_f32 {d[i]}, {sEps[0]}, {d[i]}")
        for p in (0, 2):
            a(f"v_pk_add_f32 {d[p:p + 2]}, {d[p:p + 2]}, {tmp[p:p + 2]}")
        for p in (0, 2):
            a(f"v_cvt_pk_bf16_f32 {out2[p // 2]}, {d[p]}, {d[p + 1]}")

    kvacc, zacc = wf[1][1], wf[1][2]
    for u in range(4):
        pk, vv = xf[1][2 * u], xf[1][2 * u + 1]
        for sub in range(2):
            ms = 2 * u + sub
            d = acc[2][ms]
            for p in (0, 2):
                a(f"v_pk_fma_f32 {d[p:p + 2]}, {nm4[ms][p:p + 2]}, {cs[2][0:2]}, {d[p:p + 2]}")
            for p in (0, 2):
                a(f"v_pk_mul_f32 {d[p:p + 2]}, {d[p:p + 2]}, {rs4[ms][p:p + 2]}")
            for p in (0, 2):
                a(f"v_cvt_pk_bf16_f32 {vv[2 * sub + p // 2]}, {d[p]}, {d[p + 1]}")
            d = acc[1][ms]
            for p in (0, 2):
                a(f"v_pk_fma_f32 {d[p:p + 2]}, {nm4[ms][p:p + 2]}, {cs[1][0:2]}, {d[p:p + 2]}")
            for p in (0, 2):
                a(f"v_pk_fma_f32 {d[p:p + 2]}, {d[p:p + 2]}, {rs4[ms][p:p + 2]}, {sEps}")
            phi(d, pk[2 * sub:2 * sub + 2])
        c0 = "0" if u == 0 else kvacc
        c1 = "0" if u == 0 else zacc
        a(f"v_mfma_f32_16x16x32_bf16 {kvacc}, {pk}, {vv}, {c0}")
        a(f"v_mfma_f32_16x16x32_bf16 {zacc}, {pk}, {ones}, {c1}")
    sHead, sSlot = sT[2], sT[3]
    a(f"s_lshl_b32 {sHead}, {sC}, 2")
    a(f"s_add_u32 {sHead}, {sHead}, {sW}")
    a(f"s_lshl_b32 {sSlot}, {sHead}, 4")
    a(f"s_add_u32 {sSlot}, {sSlot}, {sR}")
    a(f"s_lshl_b32 {sT[4]}, {sSlot}, 10")
    a(f"s_add_u32 {sT[4]}, {sT[4]}, {KVP_OFF}")
    a(f"s_lshl_b32 {sT[5]}, {sSlot}, 6")
    a(f"s_add_u32 {sT[5]}, {sT[5]}, {ZP_OFF}")
    a(f"v_cmp_eq_u32 vcc, 0, {vT[0]}")
    a(f"v_mov_b32 {vT[2]}, {OOB}")
    a(f"v_cndmask_b32 {vT[2]}, {vT[2]}, {vLane}, vcc")
    a(f"buffer_store_dwordx4 {kvacc}, {vL16}, {srdWS}, {sT[4]} offen sc1")
    a(f"buffer_store_dwordx4 {zacc}, {vT[2]}, {srdWS}, {sT[5]} offen sc1")
    stamp(3)
    pq = [xf[1][ms // 2][2 * (ms & 1):2 * (ms & 1) + 2] for ms in range(8)]
    for ms in range(8):
        d = acc[0][ms]
        for p in (0, 2):
            a(f"v_pk_fma_f32 {d[p:p + 2]}, {cs[0][p:p + 2]}, {st2q[ms]}, {d[p:p + 2]} op_sel_hi:[1,0,1]")
        for p in (0, 2):
            a(f"v_pk_fma_f32 {d[p:p + 2]}, {d[p:p + 2]}, {st2q[ms]}, {sEps} op_sel:[0,1,0]")
        phi(d, pq[ms])
    a(f"s_lshl_b32 {sT[4]}, {sSlot}, 3")
    a(f"s_add_u32 {sT[4]}, {sT[4]}, {FLK_OFF}")
    flag_store(sT[4], vtag)
    stamp(4)
    a(f"s_lshl_b32 {sT[4]}, {sHead}, 7")
    a(f"s_add_u32 {sT[4]}, {sT[4]}, {FLK_OFF}")
    a(f"v_lshlrev_b32 {vT[2]}, 3, {vT[0]}")
    poll(vT[2], sT[4], vB1[0], srdWS)
    stamp(5)
    part = acc[1] + acc[2]
    a(f"s_lshl_b32 {sT[4]}, {sHead}, 14")
    a(f"s_add_u32 {sT[4]}, {sT[4]}, {KVP_OFF}")
    a(f"s_lshl_b32 {sT[5]}, {sHead}, 10")
    a(f"s_add_u32 {sT[5]}, {sT[5]}, {ZP_OFF}")
    a(f"v_lshlrev_b32 {vT[2]}, 6, {vT[0]}")
    a(f"v_lshl_add_u32 {vT[2]}, {vT[1]}, 4, {vT[2]}")
    a(f"buffer_load_dwordx4 {zacc}, {vT[2]}, {srdWS}, {sT[5]} offen sc1")
    for i in range(16):
        a(f"buffer_load_dwordx4 {part[i]}, {vL16}, {srdWS}, {sT[4]} offen offset:{(i & 3) * 1024} sc1")
        if i & 3 == 3 and i < 15:
            a(f"s_add_u32 {sT[4]}, {sT[4]}, 4096")
    a("s_waitcnt vmcnt(16)")
    for sh in (8, 4, 2, 1):
        for i in range(4):
            a(f"v_add_f32_dpp {zacc[i]}, {zacc[i]}, {zacc[i]} row_ror:{sh} row_mask:0xf bank_mask:0xf")
    zb, kvb = tmp[0:2], tmp[2:4]
    a(f"v_cvt_pk_bf16_f32 {zb[0]}, {zacc[0]}, {zacc[1]}")
    a(f"v_cvt_pk_bf16_f32 {zb[1]}, {zacc[2]}, {zacc[3]}")
    den = ex
    for ms in range(8):
        a(f"v_mfma_f32_16x16x16_bf16 {den[ms]}, {zb}, {pq[ms]}, 0")
    for ms in range(8):
        a(f"v_add_f32 {den[ms][0]}, {sEps[0]}, {den[ms][0]}")
    for ms in range(8):
        a(f"v_rcp_f32 {den[ms][0]}, {den[ms][0]}")
    for i in range(2, 16, 2):
        a(f"s_waitcnt vmcnt({14 - i})")
        for k in range(2):
            for p in (0, 2):
                a(f"v_pk_add_f32 {part[k][p:p + 2]}, {part[k][p:p + 2]}, {part[i + k][p:p + 2]}")
    for p in (0, 2):
        a(f"v_pk_add_f32 {part[0][p:p + 2]}, {part[0][p:p + 2]}, {part[1][p:p + 2]}")
    a(f"v_cvt_pk_bf16_f32 {kvb[0]}, {part[0][0]}, {part[0][1]}")
    a(f"v_cvt_pk_bf16_f32 {kvb[1]}, {part[0][2]}, {part[0][3]}")
    stamp(6)
    num = acc[0]
    for ms in range(8):
        a(f"v_mfma_f32_16x16x16_bf16 {num[ms]}, {kvb}, {pq[ms]}, 0")
    a(f"s_mul_i32 {sT[4]}, {sR}, {2 * NKS}")
    a(f"s_add_u32 {sT[4]}, {sT[4]}, {sHead}")
    a(f"s_add_u32 {sT[4]}, {sT[4]}, 86")
    a(f"s_lshl_b32 {sT[4]}, {sT[4]}, 11")
    a(f"s_add_u32 {sT[5]}, {sT[4]}, {NKS * 2048}")
    for u in range(4):
        q = xf[0][u]
        for sub in range(2):
            ms = 2 * u + sub
            d = num[ms]
            for p in (0, 2):
                a(f"v_pk_mul_f32 {d[p:p + 2]}, {d[p:p + 2]}, {den[ms][0:2]} op_sel_hi:[1,0]")
            for p in (0, 2):
                a(f"v_cvt_pk_bf16_f32 {q[2 * sub + p // 2]}, {d[p]}, {d[p + 1]}")
        frag_store(q, sT[4], sT[5], u)
    a(f"s_lshl_b32 {sT[4]}, {sR}, 6")
    a(f"s_add_u32 {sT[4]}, {sT[4]}, {sHead}")
    a(f"s_lshl_b32 {sT[4]}, {sT[4]}, 3")
    a(f"s_add_u32 {sT[4]}, {sT[4]}, {FLA_OFF}")
    stamp(7)
    flag_store(sT[4], vtag)
    stamp(8)
    write_stamps(vT)
    a("s_endpgm")
    highA = V.high

    a.label("L_B")
    V = Alloc("v", 2, 256)
    vT = [V() for _ in range(6)]
    vx = [V(), V()]
    vw = [V() for _ in range(6)]
    vSa = V()
    sum_ = V(4)
    sq_ = V(4)
    xs = [V(4) for _ in range(4)]
    vtag = V(2)
    vOnesB = V()
    sRS, sBS, sKc, sSx, sSw, sM0x, sM0w, sCol, sRow = sT[0], sT[1], sAdv, sEps[0], sEps[1], sL2e[0], sL2e[1], S(), S()
    sSlotB = S()
    vm = VmCount(a)
    a(f"s_cmp_eq_u32 {sTy}, 0")
    a(f"s_movk_i32 {sRS}, 2752")
    a(f"s_movk_i32 {sBS}, 128")
    a(f"s_cselect_b32 {sRS}, 3072, {sRS}")
    a(f"s_cselect_b32 {sBS}, 1024, {sBS}")
    a(f"s_cselect_b32 {sNt}, 12, {sNt}")
    a(f"s_lshl_b32 {sT[2]}, {sC}, 7")
    a(f"s_lshl_b32 {sT[3]}, {sT0}, 5")
    a(f"s_cmp_eq_u32 {sTy}, 0")
    a(f"s_cselect_b32 {sCol}, {sT[2]}, {sT[3]}")
    a(f"v_lshrrev_b32 {vT[0]}, 3, {vLane}")
    a(f"v_and_b32 {vT[1]}, 7, {vLane}")
    a(f"v_lshrrev_b32 {vT[2]}, 4, {vLane}")
    a(f"v_xor_b32 {vT[2]}, {vT[2]}, {vT[1]}")
    a(f"v_lshlrev_b32 {vT[2]}, 4, {vT[2]}")
    a(f"v_lshl_add_u32 {vx[0]}, {vT[0]}, 10, {vT[2]}")
    a(f"v_xor_b32 {vx[1]}, 64, {vx[0]}")
    a(f"v_add_u32 {vx[1]}, 8192, {vx[1]}")
    for i in range(6):
        a(f"v_add_u32 {vT[2]}, {8 * i}, {vT[0]}")
        a(f"v_mul_u32_u24 {vT[3]}, 43, {vT[2]}")
        a(f"v_lshrrev_b32 {vT[3]}, 7, {vT[3]}")
        a(f"v_mad_i32_i24 {vT[2]}, {vT[3]}, -3, {vT[2]}")
        a(f"v_and_b32 {vT[4]}, 2, {vT[3]}")
        if i >= 3:
            a(f"v_or_b32 {vT[4]}, 4, {vT[4]}")
        a(f"v_xor_b32 {vT[4]}, {vT[4]}, {vT[1]}")
        a(f"v_mul_u32_u24 {vT[3]}, {sRS}, {vT[3]}")
        a(f"v_mad_u32_u24 {vT[3]}, {vT[2]}, {sBS}, {vT[3]}")
        a(f"v_lshl_add_u32 {vT[3]}, {vT[4]}, 4, {vT[3]}")
        a(f"v_lshrrev_b32 {vT[4]}, 1, {vT[4]}")
        a(f"v_lshl_add_u32 {vT[4]}, {vT[2]}, 2, {vT[4]}")
        a(f"v_cmp_gt_u32 vcc, {sNt}, {vT[4]}")
        a(f"v_mov_b32 {vT[5]}, {OOB}")
        a(f"v_cndmask_b32 {vw[i]}, {vT[5]}, {vT[3]}, vcc")
    if ROT:
        a(f"s_and_b32 {sT[2]}, {sJ}, 7")
        a(f"s_lshr_b32 {sT[3]}, {sJ}, 3")
        a(f"s_lshl_b32 {sT[3]}, {sT[3]}, 1")
        a(f"s_add_u32 {sKc}, {sT[2]}, {sT[3]}")
        a(f"s_lshr_b32 {sT[3]}, {sXcd}, 1")
        a(f"s_add_u32 {sKc}, {sKc}, {sT[3]}")
        a(f"s_and_b32 {sKc}, {sKc}, 7")
    else:
        a(f"s_mov_b32 {sKc}, 0")
    a(f"s_lshl_b32 {sRow}, {sR}, 2")
    a(f"s_add_u32 {sRow}, {sRow}, {sW}")
    a(f"s_lshl_b32 {sRow}, {sRow}, 15")
    a(f"s_mul_i32 {sT[2]}, {sW}, {sRS}")
    a(f"s_lshl_b32 {sT[2]}, {sT[2]}, 4")
    a(f"s_add_u32 {sCol}, {sCol}, {sT[2]}")
    a(f"s_lshl_b32 {sRS}, {sRS}, 6")
    a(f"s_lshl_b32 {sM0x}, {sW}, 12")
    a(f"s_mul_i32 {sM0w}, {sW}, 6144")
    a(f"s_add_u32 {sM0w}, {sM0w}, {WPART}")
    a(f"s_mov_b32 {sSlotB}, 0")
    a("s_waitcnt lgkmcnt(0)")
    srdX, srdW = srdA, srdB
    srd(srdX, sX, 2048 * 1024)
    a(f"s_cmp_eq_u32 {sTy}, 0")
    a(f"s_cselect_b32 {srdW[0]}, {sWQKV[0]}, {sW1[0]}")
    a(f"s_cselect_b32 {srdW[1]}, {sWQKV[1]}, {sW1[1]}")
    a(f"s_lshl_b32 {srdW[2]}, {sRS}, 3")
    a(f"s_mov_b32 {srdW[3]}, 0x20000")
    LDF = opt.get("ldflags", "")

    def chunk_ops(tag):
        g = []
        pre = [f"s_lshl_b32 {sSx}, {sKc}, 7", f"s_add_u32 {sSx}, {sSx}, {sRow}",
               f"s_mul_i32 {sSw}, {sKc}, {sRS}", f"s_add_u32 {sSw}, {sSw}, {sCol}",
               f"s_add_u32 {sKc}, {sKc}, 1", f"s_and_b32 {sKc}, {sKc}, 7",
               f"s_add_u32 m0, {sM0x}, {sSlotB}"]
        for i in range(4):
            x = pre if i == 0 else ["s_addk_i32 m0, 0x400"]
            if i == 2:
                x = x + [f"s_add_u32 {sSx}, {sSx}, 16384"]
            g.append(x + [f"buffer_load_dwordx4 {vx[i & 1]}, {srdX}, {sSx} offen {LDF} lds"])
        for i in range(6):
            x = [f"s_add_u32 m0, {sM0w}, {sSlotB}"] if i == 0 else ["s_addk_i32 m0, 0x400"]
            g.append(x + [f"buffer_load_dwordx4 {vw[i]}, {srdW}, {sSw} offen {LDF} lds"])
        g[-1] += [f"s_add_u32 {sSlotB}, {sSlotB}, {SLOT}", f"s_cmp_eq_u32 {sSlotB}, {3 * SLOT}",
                  f"s_cselect_b32 {sSlotB}, 0, {sSlotB}"]
        return g

    def emit_groups(groups, fill, tag, first_wait=None):
        fill = list(fill)
        per = (len(fill) + max(1, len(groups) - 2) - 1) // max(1, len(groups) - 2)
        for gi, g in enumerate(groups):
            for x in g:
                a(x)
            vm.issue(tag)
            if gi == 1 and first_wait:
                a(first_wait)
            if gi >= 1:
                for _ in range(per):
                    if fill:
                        a(fill.pop(0))
        for x in fill:
            a(x)

    emit_groups(chunk_ops(0), [], "c0")
    emit_groups(chunk_ops(1), [], "c1")
    stamp(1)
    srd(srdWS, sWS, WS_USED)
    srd(srdC, sW2, 1376 * 1024)
    srd(srdD, sDBG, 256)
    a(f"v_mov_b64 {sum_[0:2]}, 0")
    a(f"v_mov_b64 {sum_[2:4]}, 0")
    a(f"v_mov_b64 {sq_[0:2]}, 0")
    a(f"v_mov_b64 {sq_[2:4]}, 0")
    a(f"v_mov_b32 {vOnesB}, 0x3f803f80")
    vL16 = V()
    a(f"v_lshlrev_b32 {vL16}, 4, {vLane}")
    a(f"v_add_u32 {vSa}, {sM0x}, {vL16}")
    vW2 = V()
    a(f"v_and_b32 {vT[2]}, 2, {vT[0]}")
    a(f"v_lshlrev_b32 {vT[2]}, 1, {vT[2]}")
    a(f"v_xor_b32 {vT[2]}, {vT[2]}, {vT[1]}")
    a(f"v_lshlrev_b32 {vT[2]}, 4, {vT[2]}")
    a(f"v_lshl_add_u32 {vW2}, {vT[0]}, 10, {vT[2]}")
    vWr = [[V(), V()], [V(), V()]]
    sQ = S()
    a(f"s_mul_i32 {sQ}, {sW}, {QUART}")
    a(f"v_bfe_u32 {vT[2]}, {vLane}, 2, 2")
    a(f"v_lshrrev_b32 {vT[3]}, 5, {vLane}")
    a(f"v_lshl_add_u32 {vT[2]}, {vT[3]}, 3, {vT[2]}")
    a(f"v_lshlrev_b32 {vT[2]}, 7, {vT[2]}")
    a(f"v_bfe_u32 {vT[3]}, {vLane}, 4, 1")
    a(f"v_lshl_add_u32 {vT[2]}, {vT[3]}, 5, {vT[2]}")
    a(f"v_bfe_u32 {vT[3]}, {vLane}, 3, 1")
    a(f"v_lshl_add_u32 {vT[2]}, {vT[3]}, 6, {vT[2]}")
    a(f"v_and_b32 {vT[3]}, 3, {vLane}")
    a(f"v_lshl_add_u32 {vT[2]}, {vT[3]}, 3, {vT[2]}")
    a(f"v_add_u32 {vWr[0][0]}, {sQ}, {vT[2]}")
    a(f"v_xor_b32 {vWr[0][1]}, 64, {vWr[0][0]}")
    a(f"v_add_u32 {vWr[1][0]}, {2 * SLOT}, {vWr[0][0]}")
    a(f"v_add_u32 {vWr[1][1]}, {2 * SLOT}, {vWr[0][1]}")
    acc2 = [V(16) for _ in range(4)]
    for t in acc2:
        for i in range(0, 16, 2):
            a(f"v_mov_b64 {t[i:i + 2]}, 0")
    sRt, sCt, sWoff, sAoff = S(), S(), S(), S()
    a(f"s_lshr_b32 {sRt}, {sJ}, 3")
    a(f"s_lshl_b32 {sT[2]}, {sXcd}, 2")
    a(f"s_add_u32 {sRt}, {sRt}, {sT[2]}")
    a(f"s_and_b32 {sCt}, {sJ}, 7")
    a(f"s_lshl_b32 {sCt}, {sCt}, 7")
    a(f"s_mul_i32 {sWoff}, {sW}, {22 * 16384}")
    a(f"s_add_u32 {sWoff}, {sWoff}, {sCt}")

    stat_reads = [f"ds_read_b128 {xs[i]}, {vSa} offset:{1024 * i}" for i in range(4)]
    dots = []
    for k in range(4):
        for i in range(4):
            dots.append(f"v_dot2c_f32_bf16 {sum_[i]}, {xs[i][k]}, {vOnesB}")
        for i in range(4):
            dots.append(f"v_dot2c_f32_bf16 {sq_[i]}, {xs[i][k]}, {xs[i][k]}")
    sSl2 = sT[3]

    def adv_stat():
        a(f"s_add_u32 {sSl2}, {sSl2}, 1")
        a(f"s_cmp_eq_u32 {sSl2}, 3")
        a(f"s_cselect_b32 {sSl2}, 0, {sSl2}")
        a(f"s_cselect_b32 {sT[2]}, {(-2 * SLOT) & 0xffffffff}, {sT[4]}")
        a(f"v_add_u32 {vSa}, {sT[2]}, {vSa}")

    a(f"s_mov_b32 {sSl2}, 0")
    a(f"s_mov_b32 {sT[4]}, {SLOT}")
    a(f"s_mov_b32 {sCnt}, 0")
    a.label("L_Bloop")
    a("s_waitcnt vmcnt(10)")
    a("s_barrier")
    for r in stat_reads:
        a(r)
    adv_stat()
    if opt.get("x_nodma"):
        a("s_waitcnt lgkmcnt(0)")
        for d_ in ([] if opt.get("x_nodot") else dots): a(d_)
    else:
        emit_groups(chunk_ops(2), [] if opt.get("x_nodot") else dots, "cl", "s_waitcnt lgkmcnt(0)")
    a(f"s_add_u32 {sCnt}, {sCnt}, 1")
    a(f"s_cmp_lt_u32 {sCnt}, 6")
    a("s_cbranch_scc1 L_Bloop")
    vm.issued = ["c6"] * 10 + ["c7"] * 10
    vm.done = 0

    cellslot = [3] * 4 + [2] * 5 + [0] * 5 + [1] * 5
    cellidx = list(range(4)) + list(range(5)) * 3

    def cell_off(s):
        c = s % 19
        return cellslot[c] * SLOT + cellidx[c] * 2048

    def w2_groups(s):
        pre = []
        if s == 22:
            pre = [f"s_mov_b32 {srdC[0]}, {sWO[0]}", f"s_mov_b32 {srdC[1]}, {sWO[1]}", f"s_mov_b32 {srdC[2]}, {512 * 1024}",
                   f"s_lshl_b32 {sWoff}, {sW}, 17", f"s_add_u32 {sWoff}, {sWoff}, {sCt}"]
        ld = f"buffer_load_dwordx4 {vW2}, {srdC}, {sWoff} offen {LDF} lds"
        adv = f"s_add_u32 {sWoff}, {sWoff}, 8192"
        return [pre + [f"s_add_u32 m0, {sQ}, {cell_off(s)}", ld, adv], ["s_addk_i32 m0, 0x400", ld, adv]]

    vm.wait("c6")
    a("s_barrier")
    for r in stat_reads:
        a(r)
    adv_stat()
    a(f"v_mov_b32 {vT[2]}, 0")
    a(f"buffer_load_dwordx2 {vtag}, {vT[2]}, {srdD}, 0 offen sc1")
    vm.issue("tag")
    emit_groups(sum((w2_groups(s) for s in range(0, 4)), []), dots, "p0", "s_waitcnt lgkmcnt(0)")
    vm.wait("tag")
    a("s_barrier")
    stamp(2)
    for r in stat_reads:
        a(r)
    a(f"v_cmp_ne_u64 vcc, 0, {vtag}")
    a("s_cmp_eq_u64 vcc, exec")
    a("s_cbranch_scc1 L_tagok")
    poll(vT[2], 0, vtag, srdD, nonzero=True)
    a.label("L_tagok")
    a(f"v_readfirstlane_b32 {sTag[0]}, {vtag[0]}")
    a(f"v_readfirstlane_b32 {sTag[1]}, {vtag[1]}")
    fin = list(dots)
    fin += ["s_nop 2"]
    for mode in ("quad_perm:[1,0,3,2]", "quad_perm:[2,3,0,1]", "row_half_mirror"):
        for t in (sum_, sq_):
            for i in range(4):
                fin.append(f"v_add_f32_dpp {t[i]}, {t[i]}, {t[i]} {mode} row_mask:0xf bank_mask:0xf")
    m_, q_ = xs[0][0], xs[0][1]
    st = xs[1]
    fin += [f"v_and_b32 {vT[3]}, 3, {vLane}",
            f"v_mov_b32 {m_}, {sum_[0]}", f"v_mov_b32 {q_}, {sq_[0]}"]
    for i in range(1, 4):
        fin += [f"v_cmp_eq_u32 vcc, {i}, {vT[3]}",
                f"s_nop 1",
                f"v_cndmask_b32 {m_}, {m_}, {sum_[i]}, vcc", f"v_cndmask_b32 {q_}, {q_}, {sq_[i]}, vcc"]
    fin += [f"v_mul_f32 {m_}, 0x3b000000, {m_}",
            f"v_mul_f32 {q_}, 0x3b000000, {q_}",
            f"v_fma_f32 {q_}, -{m_}, {m_}, {q_}",
            f"v_max_f32 {q_}, 0, {q_}",
            f"v_cvt_pk_bf16_f32 {m_}, {q_}, {m_}",
            f"v_lshlrev_b32 {q_}, 16, {m_}",
            f"v_and_b32 {m_}, 0xffff0000, {m_}",
            f"v_add_f32 {q_}, 0x3727c5ac, {q_}",
            f"v_cvt_pk_bf16_f32 {q_}, {q_}, {q_}",
            f"v_and_b32 {q_}, 0xffff0000, {q_}",
            f"v_sqrt_f32 {q_}, {q_}",
            f"v_xor_b32 {st[0]}, 0x80000000, {m_}",
            f"v_cvt_pk_bf16_f32 {q_}, {q_}, {q_}",
            f"v_and_b32 {q_}, 0xffff0000, {q_}",
            f"v_rcp_f32 {st[1]}, {q_}",
            f"v_lshl_add_u32 {vT[3]}, {vT[3]}, 3, {vT[0]}",
            f"s_lshl_b32 {sT[2]}, {sW}, 5",
            f"v_add_u32 {vT[3]}, {sT[2]}, {vT[3]}",
            f"v_lshlrev_b32 {vT[4]}, 3, {vT[3]}",
            f"v_lshlrev_b32 {vT[3]}, 2, {vT[3]}",
            f"v_add_u32 {vT[4]}, {STAT2}, {vT[4]}",
            f"v_add_u32 {vT[3]}, {NMEAN}, {vT[3]}",
            f"v_mov_b32 {vT[5]}, {TAGL}",
            f"ds_write_b64 {vT[4]}, {st[0:2]}",
            f"ds_write2_b32 {vT[3]}, {st[0]}, {st[1]} offset1:128",
            f"ds_write_b64 {vT[5]}, {vtag}"]
    emit_groups(sum((w2_groups(s) for s in range(4, 9)), []), fin, "p1", "s_waitcnt lgkmcnt(0)")
    a("s_waitcnt lgkmcnt(0)")
    a("s_barrier")
    stamp(3)
    emit_groups(sum((w2_groups(s) for s in range(9, 19)), []), [], "p2")
    xres = [V(4), V(4)]
    b2r = V(4)
    vOut = V()
    srd(srdB, sB2, 1024)
    a(f"v_lshlrev_b32 {vT[2]}, 4, {vT[1]}")
    a(f"v_lshl_add_u32 {vOut}, {vT[0]}, 10, {vT[2]}")
    sOo = S()
    a(f"s_lshl_b32 {sOo}, {sRt}, 2")
    a(f"s_add_u32 {sOo}, {sOo}, {sW}")
    a(f"s_lshl_b32 {sOo}, {sOo}, 14")
    a(f"s_add_u32 {sOo}, {sOo}, {sCt}")
    a(f"s_add_u32 {sT[5]}, {sOo}, 8192")
    a(f"buffer_load_dwordx4 {xres[0]}, {vOut}, {srdX}, {sOo} offen")
    a(f"buffer_load_dwordx4 {xres[1]}, {vOut}, {srdX}, {sT[5]} offen")
    a(f"buffer_load_dwordx4 {b2r}, {vT[2]}, {srdB}, {sCt} offen")
    srd(srdD, sOUT, 2048 * 1024)
    stamp(4)
    sFl = S()
    vFl = V()
    a(f"s_lshr_b32 {sFl}, {sRt}, 1")
    a(f"s_lshl_b32 {sFl}, {sFl}, 3")
    a(f"s_add_u32 {sFl}, {sFl}, {sW}")
    a(f"s_lshl_b32 {sFl}, {sFl}, 6")
    a(f"s_add_u32 {sFl}, {sFl}, {FLA_OFF}")
    a(f"v_lshlrev_b32 {vFl}, 3, {vT[1]}")
    a(f"s_mul_i32 {sAoff}, {sRt}, {NKS}")
    a(f"s_mul_i32 {sT[2]}, {sW}, 22")
    a(f"s_add_u32 {sAoff}, {sAoff}, {sT[2]}")
    a(f"s_lshl_b32 {sAoff}, {sAoff}, 11")
    poll(vFl, sFl, vtag, srdWS, imm=256)
    vm.issued, vm.done = [], 0
    stamp(5)
    af = [[V(4), V(4)] for _ in range(DA)]
    w2f = [[V(4), V(4)] for _ in range(2)]

    def a_load(s):
        if s >= 30:
            return
        if s == 20:
            a(f"s_cmp_eq_u32 {sW}, 3")
            a(f"s_cselect_b32 {sAoff}, {OOB}, {sAoff}")
        if s == 22:
            stamp(6)
            poll(vFl, sFl, vtag, srdWS, imm=0)
            stamp(7)
            vm.done = len(vm.issued)
            a(f"s_mul_i32 {sAoff}, {sRt}, {NKS}")
            a(f"s_lshl_b32 {sT[2]}, {sW}, 3")
            a(f"s_add_u32 {sAoff}, {sAoff}, {sT[2]}")
            a(f"s_add_u32 {sAoff}, {sAoff}, 86")
            a(f"s_lshl_b32 {sAoff}, {sAoff}, 11")
        for mt in range(2):
            a(f"buffer_load_dwordx4 {af[s % DA][mt]}, {vL16}, {srdWS}, {sAoff} offen offset:{1024 * mt} sc1")
            vm.issue(f"a{s}")
        a(f"s_add_u32 {sAoff}, {sAoff}, 2048")

    def w_reads(s):
        off = cell_off(s)
        hi = off >= 2 * SLOT
        off -= 2 * SLOT * hi
        return [f"ds_read_b64_tr_b16 {w2f[s & 1][nt][2 * hf:2 * hf + 2]}, {vWr[hi][nt]} offset:{off + 512 * hf}"
                for nt in range(2) for hf in range(2)]

    for s in range(DA):
        a_load(s)
    for r in w_reads(0):
        a(r)
    for s in range(30):
        vm.wait(f"a{s}", "lgkmcnt(0)")
        if s + 1 >= 19 and s + 1 < 30:
            vm.wait(f"w{s + 1}")
        mf = [f"v_mfma_f32_32x32x16_bf16 {acc2[nt + 2 * mt]}, {w2f[s & 1][nt]}, {af[s % DA][mt]}, {acc2[nt + 2 * mt]}"
              for mt in range(2) for nt in range(2)]
        interleave(mf, w_reads(s + 1) if s + 1 < 30 else [])
        a_load(s + DA)
        if s + 19 < 30:
            for g in w2_groups(s + 19):
                for x in g:
                    a(x)
                vm.issue(f"w{s + 19}")
    stamp(8)
    a(f"v_and_b32 {vT[2]}, 31, {vLane}")
    a(f"v_bfe_u32 {vT[3]}, {vLane}, 1, 2")
    a(f"v_and_b32 {vT[4]}, 1, {vLane}")
    a(f"v_lshl_or_b32 {vT[3]}, {vT[4]}, 2, {vT[3]}")
    a(f"v_lshrrev_b32 {vT[4]}, 5, {vLane}")
    a(f"v_xor_b32 {vT[3]}, {vT[3]}, {vT[4]}")
    a(f"v_lshlrev_b32 {vT[3]}, 4, {vT[3]}")
    a(f"v_lshl_add_u32 {vT[2]}, {vT[2]}, 7, {vT[3]}")
    wa = [[V() for g in range(4)] for hi in range(2)]
    a(f"v_add_u32 {wa[0][0]}, {sQ}, {vT[2]}")
    for g in range(1, 4):
        a(f"v_xor_b32 {wa[0][g]}, {32 * g}, {wa[0][0]}")
    for g in range(4):
        a(f"v_add_u32 {wa[1][g]}, {2 * SLOT}, {wa[0][g]}")
    for i in range(4):
        for g in range(4):
            a(f"ds_write_b128 {wa[i >> 1][g]}, {acc2[i][4 * g:4 * g + 4]} offset:{(i & 1) * SLOT}")
    a(f"s_lshr_b32 {sT[2]}, {sW}, 1")
    a(f"s_mul_i32 {sT[2]}, {sT[2]}, {2 * SLOT}")
    a(f"s_and_b32 {sT[3]}, {sW}, 1")
    a(f"s_lshl_b32 {sT[3]}, {sT[3]}, 11")
    a(f"s_add_u32 {sT[2]}, {sT[2]}, {sT[3]}")
    a(f"v_bfe_u32 {vT[2]}, {vLane}, 2, 1")
    a(f"v_mul_u32_u24 {vT[2]}, {SLOT}, {vT[2]}")
    a(f"v_lshl_add_u32 {vT[2]}, {vT[0]}, 7, {vT[2]}")
    a(f"v_bfe_u32 {vT[3]}, {vLane}, 4, 2")
    a(f"v_bfe_u32 {vT[4]}, {vLane}, 3, 1")
    a(f"v_lshl_or_b32 {vT[3]}, {vT[4]}, 2, {vT[3]}")
    a(f"v_and_b32 {vT[4]}, 3, {vLane}")
    a(f"v_lshlrev_b32 {vT[4]}, 1, {vT[4]}")
    a(f"v_xor_b32 {vT[3]}, {vT[3]}, {vT[4]}")
    a(f"v_lshl_add_u32 {vT[2]}, {vT[3]}, 4, {vT[2]}")
    a(f"v_add_u32 {vT[2]}, {sT[2]}, {vT[2]}")
    a(f"v_xor_b32 {vT[3]}, 16, {vT[2]}")
    ad = [V(8), V(8)]
    bb = V(8)
    for i in range(4):
        a(f"v_lshlrev_b32 {bb[2 * i]}, 16, {b2r[i]}")
        a(f"v_and_b32 {bb[2 * i + 1]}, 0xffff0000, {b2r[i]}")
    for ps in range(2):
        for i in range(4):
            a(f"v_lshlrev_b32 {ad[ps][2 * i]}, 16, {xres[ps][i]}")
            a(f"v_and_b32 {ad[ps][2 * i + 1]}, 0xffff0000, {xres[ps][i]}")
        for i in range(0, 8, 2):
            a(f"v_pk_add_f32 {ad[ps][i:i + 2]}, {ad[ps][i:i + 2]}, {bb[i:i + 2]}")
    a("s_waitcnt lgkmcnt(0)")
    a("s_barrier")
    for ps in range(2):
        for src in range(4):
            for k in range(2):
                a(f"ds_read_b128 {acc2[src][8 * ps + 4 * k:8 * ps + 4 * k + 4]}, {vT[2 + k]} offset:{src * QUART + ps * 1024}")
    for ps in range(2):
        for src in range(4):
            a(f"s_waitcnt lgkmcnt({14 - 8 * ps - 2 * src})")
            for i in range(0, 8, 2):
                a(f"v_pk_add_f32 {ad[ps][i:i + 2]}, {ad[ps][i:i + 2]}, {acc2[src][8 * ps + i:8 * ps + i + 2]}")
        for i in range(4):
            a(f"v_cvt_pk_bf16_f32 {xres[ps][i]}, {ad[ps][2 * i]}, {ad[ps][2 * i + 1]}")
        a(f"buffer_store_dwordx4 {xres[ps]}, {vOut}, {srdD}, {sOo if ps == 0 else sT[5]} offen {opt.get('outflags', '')}")
    stamp(9)
    if "probe" in opt:
        ptr, size, base, stride, n = opt["probe"]
        a(f"s_or_b32 {sT[0]}, s2, {sW}")
        a(f"s_cmp_lg_u32 {sT[0]}, 0")
        a("s_cbranch_scc1 L_end")
        srd(srdB, R("s", ptr, 2), size)
        a(f"v_mov_b32 {vT[0]}, {base}")
        a(f"s_mov_b32 {sCnt}, 0")
        a.label("L_probe")
        a(f"buffer_load_dword {vT[1]}, {vT[0]}, {srdB}, 0 offen")
        a("s_waitcnt vmcnt(0)")
        a(f"v_add_u32 {vT[0]}, {stride}, {vT[0]}")
        a(f"s_add_u32 {sCnt}, {sCnt}, 1")
        a(f"s_cmp_lt_u32 {sCnt}, {n}")
        a("s_cbranch_scc1 L_probe")
    if "amp" in opt:
        k = opt["amp"]
        a("s_waitcnt lgkmcnt(0)")
        a(f"s_sub_u32 {sT[0]}, {sStamp[k][0]}, {sStamp[opt.get('amp0', 0)][0]}")
        a(f"s_mul_i32 {sT[0]}, {sT[0]}, 10")
        a(f"s_min_u32 {sT[0]}, {sT[0]}, 100000")
        a.label("L_amp")
        a(f"s_memrealtime {sStamp[1]}")
        a("s_waitcnt lgkmcnt(0)")
        a(f"s_sub_u32 {sT[1]}, {sStamp[1][0]}, {sStamp[9][0]}")
        a(f"s_cmp_lt_u32 {sT[1]}, {sT[0]}")
        a("s_cbranch_scc1 L_amp")
    else:
        write_stamps(vT)
    a.label("L_end")
    a("s_endpgm")
    body = a.finish(verbose=opt.get("verbose", False))
    if opt.get("verbose"):
        print("vgpr A", highA, "B", V.high, "sgpr", S.high)

    ref = open(os.path.join(os.path.dirname(os.path.abspath(__file__)), "header.txt")).read()
    txt = ref + f"; @launch grid=(256,1,1) block=(512,1,1) lds={LDS_BYTES}\n"
    txt += f""".amdgcn_target "amdgcn-amd-amdhsa--gfx950"
.text
.globl {KERN}
.p2align 8
.type {KERN},@function
{KERN}:
{body}.section .rodata,"a"
.p2align 6
.amdhsa_kernel {KERN}
  .amdhsa_next_free_vgpr 256
  .amdhsa_next_free_sgpr 102
  .amdhsa_accum_offset 256
  .amdhsa_group_segment_fixed_size 0
  .amdhsa_kernarg_size 88
  .amdhsa_user_sgpr_count 2
  .amdhsa_user_sgpr_kernarg_segment_ptr 1
  .amdhsa_system_sgpr_workgroup_id_x 1
  .amdhsa_float_denorm_mode_32 3
.end_amdhsa_kernel
"""
    return txt


if __name__ == "__main__":
    import json
    opt = json.loads(sys.argv[2]) if len(sys.argv) > 2 else {}
    opt.setdefault("verbose", True)
    out = sys.argv[1] if len(sys.argv) > 1 else f"cdna_kernels/{NAME}.s"
    open(out, "w").write(gen(opt))
```

```python
import sys, os
sys.path.insert(0, os.path.dirname(os.path.abspath(__file__)))
from asmlib import Asm, Alloc, R, VmCount

NAME = "parallel_sum__linear_attn_block__dense_activation_squared_relu__prompt"
KERN = NAME + "_kernel"

NKS = 118
A2_OFF = 0
A2_SIZE = 32 * NKS * 2048
KVP_OFF = 0x780000
ZP_OFF = KVP_OFF + 32 * 16 * 1024
FLA_OFF = ZP_OFF + 32 * 16 * 64
FLK_OFF = FLA_OFF + 16 * 512
EPO_OFF = FLK_OFF + 32 * 128
WS_USED = EPO_OFF + 128
STAMP_OFF = 0x900000
assert A2_SIZE <= KVP_OFF and WS_USED <= STAMP_OFF
OOB = 0x40000000

SLOT = 40960
QUART = 10240
WPART = 16384
STAT2 = 3 * SLOT + 8192
NMEAN = STAT2 + 1024
RSTD = NMEAN + 512
TAGL = 3 * SLOT + QUART + 8192
LDS_BYTES = 4 * SLOT

POLL_CAP = 1 << 15


def gen(opt):
    stamps = opt.get("stamps", False)
    DA = opt.get("DA", 4)
    ROT = opt.get("rot", 1)
    a = Asm()
    S = Alloc("s", 26, 102)
    sX, sWQKV, sWO, sW1, sB1, sW2, sB2 = (R("s", i, 2) for i in (4, 6, 8, 12, 14, 16, 18))
    sOUT, sDBG, sWS = R("s", 20, 2), R("s", 22, 2), R("s", 24, 2)
    sTag = S(2)
    srdA, srdB, srdC, srdD, srdWS = S(4), S(4), S(4), S(4), S(4)
    sWave, sW, sJ, sXcd, sR, sC, sTy, sT0, sNt = (S() for _ in range(9))
    sT = [S() for _ in range(8)]
    sCnt = S()
    sStamp = [S(2) for _ in range(10)] if stamps else None
    nstamp = [0]

    def stamp(i):
        if stamps:
            a(f"{'s_memtime' if opt.get('cyc') else 's_memrealtime'} {sStamp[i]} ; s_memrealtime")

    def srd(dst, ptr, size):
        a(f"s_mov_b32 {dst[0]}, {ptr[0]}")
        a(f"s_mov_b32 {dst[1]}, {ptr[1]}")
        a(f"s_mov_b32 {dst[2]}, {size}")
        a(f"s_mov_b32 {dst[3]}, 0x20000")

    def write_stamps(vt):
        if not stamps or "amp" in opt:
            return
        a("s_waitcnt vmcnt(0) lgkmcnt(0)")
        a(f"s_lshl_b32 {sT[0]}, s2, 3")
        a(f"s_add_u32 {sT[0]}, {sT[0]}, {sWave}")
        a(f"s_lshl_b32 {sT[0]}, {sT[0]}, 6")
        a(f"s_add_u32 {sT[0]}, {sT[0]}, {STAMP_OFF}")
        a(f"s_mov_b32 {srdWS[2]}, {STAMP_OFF + 0x40000}")
        a(f"v_mov_b32 {vt[1]}, 0")
        a("s_mov_b64 exec, 1")
        for i in range(10):
            a(f"v_mov_b32 {vt[0]}, {sStamp[i][0]}")
            a(f"buffer_store_dword {vt[0]}, {vt[1]}, {srdWS}, {sT[0]} offen offset:{4 * i}")
        a("s_waitcnt vmcnt(0)")

    def poll(vaddr, soff, vtmp, srd_, imm=0, nonzero=False):
        L = a.uid("L_poll")
        D = a.uid("L_polldone")
        a(f"s_mov_b32 {sCnt}, 0")
        a.label(L)
        a(f"buffer_load_dwordx2 {vtmp}, {vaddr}, {srd_}, {soff} offen offset:{imm} sc1")
        a("s_waitcnt vmcnt(0)")
        if nonzero:
            a(f"v_cmp_ne_u64 vcc, 0, {vtmp}")
        else:
            a(f"v_cmp_eq_u64 vcc, {sTag}, {vtmp}")
        a("s_cmp_eq_u64 vcc, exec")
        a(f"s_cbranch_scc1 {D}")
        a(f"s_add_u32 {sCnt}, {sCnt}, 1")
        a(f"s_cmp_lt_u32 {sCnt}, {POLL_CAP}")
        a("s_sleep 1")
        a(f"s_cbranch_scc1 {L}")
        a.label(D)

    vLane = R("v", 1)
    a("s_cmp_ge_u32 s2, 0x100")
    a("s_cbranch_scc1 L_end")
    a("s_load_dwordx16 s[4:19], s[0:1], 0")
    a("s_load_dwordx4 s[20:23], s[0:1], 64")
    a("s_load_dwordx2 s[24:25], s[0:1], 80")
    if stamps:
        for i in range(10):
            a(f"s_mov_b64 {sStamp[i]}, 0")
    stamp(0)
    a("v_lshrrev_b32 v2, 6, v0")
    a(f"v_and_b32 {vLane}, 63, v0")
    a(f"v_readfirstlane_b32 {sWave}, v2")
    a(f"s_and_b32 {sXcd}, s2, 7")
    a(f"s_lshr_b32 {sJ}, s2, 3")
    if opt.get("codepf", 1):
        a(f"s_cmp_lg_u32 {sWave}, 0")
        a("s_cbranch_scc1 L_nopf")
        a(f"s_getpc_b64 {sTag}")
        a.label("L_pc")
        a(f"s_lshl_b32 {sT[0]}, {sJ}, 10")
        a(f"v_and_b32 v2, 7, v0")
        a(f"v_lshl_add_u32 v2, v2, 7, {sT[0]}")
        a("v_min_u32 v2, L_end-L_pc, v2")
        a(f"global_load_dword v255, v2, {sTag}")
        a.label("L_nopf")
    a(f"s_and_b32 {sT[0]}, {sXcd}, 1")
    a(f"s_lshl_b32 {sT[0]}, {sT[0]}, 3")
    a(f"s_and_b32 {sT[1]}, {sJ}, 7")
    a(f"s_add_u32 {sR}, {sT[0]}, {sT[1]}")
    a(f"s_lshr_b32 {sT[2]}, {sJ}, 3")
    a(f"s_lshr_b32 {sTy}, {sT[2]}, 1")
    a(f"s_and_b32 {sT[3]}, {sT[2]}, 1")
    a(f"s_and_b32 {sC}, {sXcd}, 6")
    a(f"s_add_u32 {sC}, {sC}, {sT[3]}")
    a(f"s_lshr_b32 {sT[4]}, {sXcd}, 1")
    a(f"s_mul_i32 {sT0}, {sT[4]}, 22")
    a(f"s_cmp_lt_u32 {sC}, 6")
    a(f"s_cselect_b32 {sT[5]}, 12, 10")
    a(f"s_cmp_eq_u32 {sT[3]}, 0")
    a(f"s_cselect_b32 {sNt}, {sT[5]}, 10")
    a(f"s_cselect_b32 {sT[5]}, 0, {sT[5]}")
    a(f"s_add_u32 {sT0}, {sT0}, {sT[5]}")
    a(f"s_and_b32 {sW}, {sWave}, 3")
    a(f"s_cmp_ge_u32 {sWave}, 4")
    a("s_cbranch_scc1 L_B")

    V = Alloc("v", 2, 256)
    vT = [V() for _ in range(6)]
    acc = [[V(4) for ms in range(8)] for nt in range(3)]
    cs = [V(4) for nt in range(3)]
    ones = V(4)
    vXa = [V(), V()]
    vWa = V()
    vL16 = V()
    vOne = V()
    vB1 = [V(2) for _ in range(3)]
    mFr = V.mark()
    xf = [[V(4) for ms in range(8)] for st in range(2)]
    wf = [[V(4) for nt in range(3)] for st in range(2)]
    sAdv = S()
    sEps, sL2e = S(2), S(2)

    for nt in range(3):
        for ms in range(8):
            a(f"v_mov_b64 {acc[nt][ms][0:2]}, 0")
            a(f"v_mov_b64 {acc[nt][ms][2:4]}, 0")
        a(f"v_mov_b64 {cs[nt][0:2]}, 0")
        a(f"v_mov_b64 {cs[nt][2:4]}, 0")
    for i in range(4):
        a(f"v_mov_b32 {ones[i]}, 0x3f803f80")
    a(f"v_and_b32 {vT[0]}, 15, {vLane}")
    a(f"v_lshrrev_b32 {vT[1]}, 4, {vLane}")
    a(f"v_lshrrev_b32 {vT[2]}, 1, {vT[0]}")
    a(f"v_xor_b32 {vT[2]}, {vT[2]}, {vT[1]}")
    a(f"v_lshlrev_b32 {vT[2]}, 4, {vT[2]}")
    a(f"v_lshl_add_u32 {vXa[0]}, {vT[0]}, 7, {vT[2]}")
    a(f"v_xor_b32 {vXa[1]}, 64, {vXa[0]}")
    a(f"v_bfe_u32 {vT[2]}, {vLane}, 2, 2")
    a(f"v_lshl_add_u32 {vT[3]}, {vT[1]}, 3, {vT[2]}")
    a(f"v_mul_u32_u24 {vT[3]}, 384, {vT[3]}")
    a(f"v_bfe_u32 {vT[2]}, {vLane}, 3, 2")
    a(f"v_xor_b32 {vT[2]}, {sW}, {vT[2]}")
    a(f"v_lshl_add_u32 {vT[3]}, {vT[2]}, 5, {vT[3]}")
    a(f"v_and_b32 {vT[2]}, 3, {vLane}")
    a(f"v_lshl_add_u32 {vWa}, {vT[2]}, 3, {vT[3]}")
    a(f"v_lshlrev_b32 {vL16}, 4, {vLane}")
    a(f"v_cmp_eq_u32 vcc, 0, {vLane}")
    a(f"v_mov_b32 {vT[2]}, {OOB}")
    a(f"v_cndmask_b32 {vOne}, {vT[2]}, {vLane}, vcc")
    a(f"s_mov_b32 {sEps[0]}, 0x358637bd")
    a(f"s_mov_b32 {sEps[1]}, 0x358637bd")
    a(f"s_mov_b32 {sL2e[0]}, 0x3fb8aa3b")
    a(f"s_mov_b32 {sL2e[1]}, 0x3fb8aa3b")
    a("s_waitcnt lgkmcnt(0)")
    srd(srdWS, sWS, WS_USED)
    srd(srdA, sB1, 2752)
    srd(srdB, sDBG, 256)
    a(f"s_or_b32 {sT[0]}, s2, {sWave}")
    a(f"s_cmp_lg_u32 {sT[0]}, 0")
    a("s_cbranch_scc1 L_notag")
    t2 = xf[0][0][0:2]
    a(f"s_mov_b32 {sT[0]}, {EPO_OFF}")
    a(f"buffer_load_dwordx2 {t2}, {vOne}, {srdWS}, {sT[0]} offen sc1")
    a("s_waitcnt vmcnt(0)")
    a(f"v_add_u32 {t2[0]}, 0x7f4a7c16, {t2[0]}")
    a(f"v_add_u32 {t2[1]}, 0x9e3779b9, {t2[1]}")
    a(f"v_or_b32 {t2[0]}, 1, {t2[0]}")
    a(f"buffer_store_dwordx2 {t2}, {vOne}, {srdB}, 0 offen sc1")
    a(f"buffer_store_dwordx2 {t2}, {vOne}, {srdWS}, {sT[0]} offen sc1")
    a("s_waitcnt vmcnt(0)")
    a.label("L_notag")
    a(f"s_cmp_eq_u32 {sTy}, 0")
    a("s_cbranch_scc1 L_Aq")
    a(f"v_lshlrev_b32 {vT[2]}, 3, {vT[1]}")
    a(f"s_add_u32 {sT[0]}, {sT0}, {sW}")
    a(f"s_lshl_b32 {sT[0]}, {sT[0]}, 5")
    for nt in range(3):
        a(f"buffer_load_dwordx2 {vB1[nt]}, {vT[2]}, {srdA}, {sT[0]} offen offset:{128 * nt}")

    def reads(st, kk):
        r = []
        for nt in range(3):
            for hf in range(2):
                r.append(f"ds_read_b64_tr_b16 {wf[st][nt][2 * hf:2 * hf + 2]}, {vWa} offset:{WPART + (32 * kk + 4 * hf) * 384 + nt * 128}")
        xs = [f"ds_read_b128 {xf[st][ms]}, {vXa[kk]} offset:{ms * 2048}" for ms in range(8)]
        if opt.get("x_noread"): return []
        return r[0:2] + xs[0:4] + r[2:4] + xs[4:8] + r[4:6]

    def mfmas(st, nm):
        m = []
        for nt in range(3):
            for ms in range(9):
                d = acc[nt][ms] if ms < 8 else cs[nt]
                x = xf[st][ms] if ms < 8 else ones
                A, B = (wf[st][nt], x) if nm[nt] else (x, wf[st][nt])
                m.append(f"v_mfma_f32_16x16x32_bf16 {d}, {A}, {B}, {d}")
        if opt.get("x_nomfma"): return []
        return m

    def interleave(ms_, other):
        o = list(other)
        for m in ms_:
            a(m)
            if o:
                a(o.pop(0))
        for x in o:
            a(x)

    def mainloop(tag, nm, tail_reads):
        a(f"s_mov_b32 {sCnt}, 0")
        a(f"s_mov_b32 {sT[0]}, 0")
        a("s_barrier")
        stamp(1)
        for r in reads(0, 0):
            a(r)
        a(".p2align 3")
        a.label(f"L_loop{tag}")
        a("s_waitcnt lgkmcnt(0)")
        a(f"s_add_u32 {sT[0]}, {sT[0]}, 1")
        interleave(mfmas(0, nm), reads(1, 1))
        a(f"s_cmp_eq_u32 {sT[0]}, 3")
        a(f"s_cselect_b32 {sT[0]}, 0, {sT[0]}")
        a(f"s_cselect_b32 {sAdv}, {(-2 * SLOT) & 0xffffffff}, {sT[1]}")
        a(f"s_add_u32 {sCnt}, {sCnt}, 1")
        a(f"s_cmp_eq_u32 {sCnt}, 8")
        a(f"v_add_u32 {vXa[0]}, {sAdv}, {vXa[0]}")
        a(f"v_add_u32 {vXa[1]}, {sAdv}, {vXa[1]}")
        a(f"v_add_u32 {vWa}, {sAdv}, {vWa}")
        a("s_waitcnt lgkmcnt(0)")
        a("s_barrier")
        a(f"s_cbranch_scc1 L_tail{tag}")
        interleave(mfmas(1, nm), reads(0, 0))
        a(f"s_branch L_loop{tag}")
        a(".p2align 3")
        a.label(f"L_tail{tag}")
        stamp(2)
        interleave(mfmas(1, nm), tail_reads)

    def tag_read(v2):
        a(f"v_readfirstlane_b32 {sTag[0]}, {v2[0]}")
        a(f"v_readfirstlane_b32 {sTag[1]}, {v2[1]}")

    def frag_store(q, soff_lo, soff_hi, u):
        a(f"v_permlane16_swap_b32 {q[0]}, {q[2]}")
        a(f"v_permlane16_swap_b32 {q[1]}, {q[3]}")
        so = soff_lo if u < 2 else soff_hi
        a(f"buffer_store_dwordx4 {q}, {vL16}, {srdWS}, {so} offen offset:{(u & 1) * 1024} sc1")

    def flag_store(soff, v2):
        a(f"v_mov_b32 {v2[0]}, {sTag[0]}")
        a(f"v_mov_b32 {v2[1]}, {sTag[1]}")
        a("s_waitcnt vmcnt(0)")
        a(f"buffer_store_dwordx2 {v2}, {vOne}, {srdWS}, {soff} offen sc1")

    a(f"s_mov_b32 {sT[1]}, {SLOT}")
    st2 = [xf[0][ms // 2][2 * (ms & 1):2 * (ms & 1) + 2] for ms in range(8)]
    vtag = xf[0][4][0:2]
    vSt = vT[4]
    vZero = vT[5]
    a(f"v_lshlrev_b32 {vSt}, 3, {vT[0]}")
    a(f"v_add_u32 {vSt}, {STAT2}, {vSt}")
    a(f"v_mov_b32 {vZero}, {TAGL}")
    tail = [f"ds_read_b64 {st2[ms]}, {vSt} offset:{128 * ms}" for ms in range(8)] + [f"ds_read_b64 {vtag}, {vZero}"]
    mainloop("H", [1, 1, 1], tail)
    bfp = [xf[0][5], xf[0][6], xf[0][7]]
    a("s_waitcnt vmcnt(0) lgkmcnt(0)")
    for nt in range(3):
        for i in range(2):
            a(f"v_lshlrev_b32 {bfp[nt][2 * i]}, 16, {vB1[nt][i]}")
            a(f"v_and_b32 {bfp[nt][2 * i + 1]}, 0xffff0000, {vB1[nt][i]}")
    tag_read(vtag)
    a(f"s_mul_i32 {sT[2]}, {sR}, {2 * NKS}")
    a(f"s_add_u32 {sT[2]}, {sT[2]}, {sT0}")
    a(f"s_add_u32 {sT[2]}, {sT[2]}, {sW}")
    a(f"s_lshl_b32 {sT[2]}, {sT[2]}, 11")
    a(f"s_add_u32 {sT[3]}, {sT[2]}, {NKS * 2048}")
    qs = [xf[1][i] for i in range(8)]
    qi = 0
    for nt in range(3):
        if nt == 2:
            a(f"s_add_u32 {sT[4]}, {sW}, 8")
            a(f"s_cmp_ge_u32 {sT[4]}, {sNt}")
            a("s_cbranch_scc1 L_Hdone")
        for u in range(4):
            q = qs[qi % 8]
            qi += 1
            for sub in range(2):
                ms = 2 * u + sub
                d = acc[nt][ms]
                for p in (0, 2):
                    a(f"v_pk_fma_f32 {d[p:p + 2]}, {cs[nt][p:p + 2]}, {st2[ms]}, {d[p:p + 2]} op_sel_hi:[1,0,1]")
                for p in (0, 2):
                    a(f"v_pk_fma_f32 {d[p:p + 2]}, {d[p:p + 2]}, {st2[ms]}, {bfp[nt][p:p + 2]} op_sel:[0,1,0]")
                for i in range(4):
                    a(f"v_max_f32 {d[i]}, 0, {d[i]}")
                for p in (0, 2):
                    a(f"v_pk_mul_f32 {d[p:p + 2]}, {d[p:p + 2]}, {d[p:p + 2]}")
                for p in (0, 2):
                    a(f"v_cvt_pk_bf16_f32 {q[2 * sub + p // 2]}, {d[p]}, {d[p + 1]}")
            frag_store(q, sT[2], sT[3], u)
        if nt < 2:
            a(f"s_add_u32 {sT[2]}, {sT[2]}, {4 * 2048}")
            a(f"s_add_u32 {sT[3]}, {sT[3]}, {4 * 2048}")
    a.label("L_Hdone")
    stamp(3)
    a(f"s_lshl_b32 {sT[2]}, {sR}, 4")
    a(f"s_add_u32 {sT[2]}, {sT[2]}, {sC}")
    a(f"s_lshl_b32 {sT[2]}, {sT[2]}, 2")
    a(f"s_add_u32 {sT[2]}, {sT[2]}, {sW}")
    a(f"s_lshl_b32 {sT[2]}, {sT[2]}, 3")
    a(f"s_add_u32 {sT[2]}, {sT[2]}, {FLA_OFF + 256}")
    flag_store(sT[2], vtag)
    stamp(4)
    write_stamps(vT)
    a("s_endpgm")

    a.label("L_Aq")
    a(f"s_mov_b32 {sT[1]}, {SLOT}")
    ex = [V(4) for _ in range(8)]
    nm4 = xf[0]
    rs4 = ex
    st2q = [wf[0][ms // 2][2 * (ms & 1):2 * (ms & 1) + 2] for ms in range(6)] + [vB1[0], vB1[1]]
    vtag = vB1[2]
    a(f"v_lshlrev_b32 {vSt}, 3, {vT[0]}")
    a(f"v_add_u32 {vSt}, {STAT2}, {vSt}")
    a(f"v_mov_b32 {vZero}, {TAGL}")
    a(f"v_lshlrev_b32 {vT[3]}, 4, {vT[1]}")
    a(f"v_add_u32 {vT[3]}, {NMEAN}, {vT[3]}")
    tail = []
    for ms in range(8):
        tail.append(f"ds_read_b128 {nm4[ms]}, {vT[3]} offset:{64 * ms}")
        tail.append(f"ds_read_b128 {rs4[ms]}, {vT[3]} offset:{512 + 64 * ms}")
    tail += [f"ds_read_b64 {st2q[ms]}, {vSt} offset:{128 * ms}" for ms in range(8)] + [f"ds_read_b64 {vtag}, {vZero}"]
    mainloop("Q", [1, 0, 0], tail)
    a("s_waitcnt vmcnt(0) lgkmcnt(0)")
    tag_read(vtag)
    tmp = wf[1][0]

    def phi(d, out2):
        for p in (0, 2):
            a(f"v_pk_mul_f32 {tmp[p:p + 2]}, {d[p:p + 2]}, {sL2e}")
        for i in range(4):
            a(f"v_exp_f32_e64 {tmp[i]}, {tmp[i]} clamp")
        for i in range(4):
            a(f"v_max_f32 {d[i]}, {sEps[0]}, {d[i]}")
        for p in (0, 2):
            a(f"v_pk_add_f32 {d[p:p + 2]}, {d[p:p + 2]}, {tmp[p:p + 2]}")
        for p in (0, 2):
            a(f"v_cvt_pk_bf16_f32 {out2[p // 2]}, {d[p]}, {d[p + 1]}")

    kvacc, zacc = wf[1][1], wf[1][2]
    for u in range(4):
        pk, vv = xf[1][2 * u], xf[1][2 * u + 1]
        for sub in range(2):
            ms = 2 * u + sub
            d = acc[2][ms]
            for p in (0, 2):
                a(f"v_pk_fma_f32 {d[p:p + 2]}, {nm4[ms][p:p + 2]}, {cs[2][0:2]}, {d[p:p + 2]}")
            for p in (0, 2):
                a(f"v_pk_mul_f32 {d[p:p + 2]}, {d[p:p + 2]}, {rs4[ms][p:p + 2]}")
            for p in (0, 2):
                a(f"v_cvt_pk_bf16_f32 {vv[2 * sub + p // 2]}, {d[p]}, {d[p + 1]}")
            d = acc[1][ms]
            for p in (0, 2):
                a(f"v_pk_fma_f32 {d[p:p + 2]}, {nm4[ms][p:p + 2]}, {cs[1][0:2]}, {d[p:p + 2]}")
            for p in (0, 2):
                a(f"v_pk_fma_f32 {d[p:p + 2]}, {d[p:p + 2]}, {rs4[ms][p:p + 2]}, {sEps}")
            phi(d, pk[2 * sub:2 * sub + 2])
        c0 = "0" if u == 0 else kvacc
        c1 = "0" if u == 0 else zacc
        a(f"v_mfma_f32_16x16x32_bf16 {kvacc}, {pk}, {vv}, {c0}")
        a(f"v_mfma_f32_16x16x32_bf16 {zacc}, {pk}, {ones}, {c1}")
    sHead, sSlot = sT[2], sT[3]
    a(f"s_lshl_b32 {sHead}, {sC}, 2")
    a(f"s_add_u32 {sHead}, {sHead}, {sW}")
    a(f"s_lshl_b32 {sSlot}, {sHead}, 4")
    a(f"s_add_u32 {sSlot}, {sSlot}, {sR}")
    a(f"s_lshl_b32 {sT[4]}, {sSlot}, 10")
    a(f"s_add_u32 {sT[4]}, {sT[4]}, {KVP_OFF}")
    a(f"s_lshl_b32 {sT[5]}, {sSlot}, 6")
    a(f"s_add_u32 {sT[5]}, {sT[5]}, {ZP_OFF}")
    a(f"v_cmp_eq_u32 vcc, 0, {vT[0]}")
    a(f"v_mov_b32 {vT[2]}, {OOB}")
    a(f"v_cndmask_b32 {vT[2]}, {vT[2]}, {vLane}, vcc")
    a(f"buffer_store_dwordx4 {kvacc}, {vL16}, {srdWS}, {sT[4]} offen sc1")
    a(f"buffer_store_dwordx4 {zacc}, {vT[2]}, {srdWS}, {sT[5]} offen sc1")
    stamp(3)
    pq = [xf[1][ms // 2][2 * (ms & 1):2 * (ms & 1) + 2] for ms in range(8)]
    for ms in range(8):
        d = acc[0][ms]
        for p in (0, 2):
            a(f"v_pk_fma_f32 {d[p:p + 2]}, {cs[0][p:p + 2]}, {st2q[ms]}, {d[p:p + 2]} op_sel_hi:[1,0,1]")
        for p in (0, 2):
            a(f"v_pk_fma_f32 {d[p:p + 2]}, {d[p:p + 2]}, {st2q[ms]}, {sEps} op_sel:[0,1,0]")
        phi(d, pq[ms])
    a(f"s_lshl_b32 {sT[4]}, {sSlot}, 3")
    a(f"s_add_u32 {sT[4]}, {sT[4]}, {FLK_OFF}")
    flag_store(sT[4], vtag)
    stamp(4)
    a(f"s_lshl_b32 {sT[4]}, {sHead}, 7")
    a(f"s_add_u32 {sT[4]}, {sT[4]}, {FLK_OFF}")
    a(f"v_lshlrev_b32 {vT[2]}, 3, {vT[0]}")
    poll(vT[2], sT[4], vB1[0], srdWS)
    stamp(5)
    part = acc[1] + acc[2]
    a(f"s_lshl_b32 {sT[4]}, {sHead}, 14")
    a(f"s_add_u32 {sT[4]}, {sT[4]}, {KVP_OFF}")
    a(f"s_lshl_b32 {sT[5]}, {sHead}, 10")
    a(f"s_add_u32 {sT[5]}, {sT[5]}, {ZP_OFF}")
    a(f"v_lshlrev_b32 {vT[2]}, 6, {vT[0]}")
    a(f"v_lshl_add_u32 {vT[2]}, {vT[1]}, 4, {vT[2]}")
    a(f"buffer_load_dwordx4 {zacc}, {vT[2]}, {srdWS}, {sT[5]} offen sc1")
    for i in range(16):
        a(f"buffer_load_dwordx4 {part[i]}, {vL16}, {srdWS}, {sT[4]} offen offset:{(i & 3) * 1024} sc1")
        if i & 3 == 3 and i < 15:
            a(f"s_add_u32 {sT[4]}, {sT[4]}, 4096")
    a("s_waitcnt vmcnt(16)")
    for sh in (8, 4, 2, 1):
        for i in range(4):
            a(f"v_add_f32_dpp {zacc[i]}, {zacc[i]}, {zacc[i]} row_ror:{sh} row_mask:0xf bank_mask:0xf")
    zb, kvb = tmp[0:2], tmp[2:4]
    a(f"v_cvt_pk_bf16_f32 {zb[0]}, {zacc[0]}, {zacc[1]}")
    a(f"v_cvt_pk_bf16_f32 {zb[1]}, {zacc[2]}, {zacc[3]}")
    den = ex
    for ms in range(8):
        a(f"v_mfma_f32_16x16x16_bf16 {den[ms]}, {zb}, {pq[ms]}, 0")
    for ms in range(8):
        a(f"v_add_f32 {den[ms][0]}, {sEps[0]}, {den[ms][0]}")
    for ms in range(8):
        a(f"v_rcp_f32 {den[ms][0]}, {den[ms][0]}")
    for i in range(2, 16, 2):
        a(f"s_waitcnt vmcnt({14 - i})")
        for k in range(2):
            for p in (0, 2):
                a(f"v_pk_add_f32 {part[k][p:p + 2]}, {part[k][p:p + 2]}, {part[i + k][p:p + 2]}")
    for p in (0, 2):
        a(f"v_pk_add_f32 {part[0][p:p + 2]}, {part[0][p:p + 2]}, {part[1][p:p + 2]}")
    a(f"v_cvt_pk_bf16_f32 {kvb[0]}, {part[0][0]}, {part[0][1]}")
    a(f"v_cvt_pk_bf16_f32 {kvb[1]}, {part[0][2]}, {part[0][3]}")
    stamp(6)
    num = acc[0]
    for ms in range(8):
        a(f"v_mfma_f32_16x16x16_bf16 {num[ms]}, {kvb}, {pq[ms]}, 0")
    a(f"s_mul_i32 {sT[4]}, {sR}, {2 * NKS}")
    a(f"s_add_u32 {sT[4]}, {sT[4]}, {sHead}")
    a(f"s_add_u32 {sT[4]}, {sT[4]}, 86")
    a(f"s_lshl_b32 {sT[4]}, {sT[4]}, 11")
    a(f"s_add_u32 {sT[5]}, {sT[4]}, {NKS * 2048}")
    for u in range(4):
        q = xf[0][u]
        for sub in range(2):
            ms = 2 * u + sub
            d = num[ms]
            for p in (0, 2):
                a(f"v_pk_mul_f32 {d[p:p + 2]}, {d[p:p + 2]}, {den[ms][0:2]} op_sel_hi:[1,0]")
            for p in (0, 2):
                a(f"v_cvt_pk_bf16_f32 {q[2 * sub + p // 2]}, {d[p]}, {d[p + 1]}")
        frag_store(q, sT[4], sT[5], u)
    a(f"s_lshl_b32 {sT[4]}, {sR}, 6")
    a(f"s_add_u32 {sT[4]}, {sT[4]}, {sHead}")
    a(f"s_lshl_b32 {sT[4]}, {sT[4]}, 3")
    a(f"s_add_u32 {sT[4]}, {sT[4]}, {FLA_OFF}")
    stamp(7)
    flag_store(sT[4], vtag)
    stamp(8)
    write_stamps(vT)
    a("s_endpgm")
    highA = V.high

    a.label("L_B")
    V = Alloc("v", 2, 256)
    vT = [V() for _ in range(6)]
    vx = [V(), V()]
    vw = [V() for _ in range(6)]
    vSa = V()
    sum_ = V(4)
    sq_ = V(4)
    xs = [V(4) for _ in range(4)]
    vtag = V(2)
    vOnesB = V()
    sRS, sBS, sKc, sSx, sSw, sM0x, sM0w, sCol, sRow = sT[0], sT[1], sAdv, sEps[0], sEps[1], sL2e[0], sL2e[1], S(), S()
    sSlotB = S()
    vm = VmCount(a)
    a(f"s_cmp_eq_u32 {sTy}, 0")
    a(f"s_movk_i32 {sRS}, 2752")
    a(f"s_movk_i32 {sBS}, 128")
    a(f"s_cselect_b32 {sRS}, 3072, {sRS}")
    a(f"s_cselect_b32 {sBS}, 1024, {sBS}")
    a(f"s_cselect_b32 {sNt}, 12, {sNt}")
    a(f"s_lshl_b32 {sT[2]}, {sC}, 7")
    a(f"s_lshl_b32 {sT[3]}, {sT0}, 5")
    a(f"s_cmp_eq_u32 {sTy}, 0")
    a(f"s_cselect_b32 {sCol}, {sT[2]}, {sT[3]}")
    a(f"v_lshrrev_b32 {vT[0]}, 3, {vLane}")
    a(f"v_and_b32 {vT[1]}, 7, {vLane}")
    a(f"v_lshrrev_b32 {vT[2]}, 4, {vLane}")
    a(f"v_xor_b32 {vT[2]}, {vT[2]}, {vT[1]}")
    a(f"v_lshlrev_b32 {vT[2]}, 4, {vT[2]}")
    a(f"v_lshl_add_u32 {vx[0]}, {vT[0]}, 10, {vT[2]}")
    a(f"v_xor_b32 {vx[1]}, 64, {vx[0]}")
    a(f"v_add_u32 {vx[1]}, 8192, {vx[1]}")
    for i in range(6):
        a(f"v_add_u32 {vT[2]}, {8 * i}, {vT[0]}")
        a(f"v_mul_u32_u24 {vT[3]}, 43, {vT[2]}")
        a(f"v_lshrrev_b32 {vT[3]}, 7, {vT[3]}")
        a(f"v_mad_i32_i24 {vT[2]}, {vT[3]}, -3, {vT[2]}")
        a(f"v_and_b32 {vT[4]}, 2, {vT[3]}")
        if i >= 3:
            a(f"v_or_b32 {vT[4]}, 4, {vT[4]}")
        a(f"v_xor_b32 {vT[4]}, {vT[4]}, {vT[1]}")
        a(f"v_mul_u32_u24 {vT[3]}, {sRS}, {vT[3]}")
        a(f"v_mad_u32_u24 {vT[3]}, {vT[2]}, {sBS}, {vT[3]}")
        a(f"v_lshl_add_u32 {vT[3]}, {vT[4]}, 4, {vT[3]}")
        a(f"v_lshrrev_b32 {vT[4]}, 1, {vT[4]}")
        a(f"v_lshl_add_u32 {vT[4]}, {vT[2]}, 2, {vT[4]}")
        a(f"v_cmp_gt_u32 vcc, {sNt}, {vT[4]}")
        a(f"v_mov_b32 {vT[5]}, {OOB}")
        a(f"v_cndmask_b32 {vw[i]}, {vT[5]}, {vT[3]}, vcc")
    if ROT:
        a(f"s_and_b32 {sT[2]}, {sJ}, 7")
        a(f"s_lshr_b32 {sT[3]}, {sJ}, 3")
        a(f"s_lshl_b32 {sT[3]}, {sT[3]}, 1")
        a(f"s_add_u32 {sKc}, {sT[2]}, {sT[3]}")
        a(f"s_lshr_b32 {sT[3]}, {sXcd}, 1")
        a(f"s_add_u32 {sKc}, {sKc}, {sT[3]}")
        a(f"s_and_b32 {sKc}, {sKc}, 7")
    else:
        a(f"s_mov_b32 {sKc}, 0")
    a(f"s_lshl_b32 {sRow}, {sR}, 2")
    a(f"s_add_u32 {sRow}, {sRow}, {sW}")
    a(f"s_lshl_b32 {sRow}, {sRow}, 15")
    a(f"s_mul_i32 {sT[2]}, {sW}, {sRS}")
    a(f"s_lshl_b32 {sT[2]}, {sT[2]}, 4")
    a(f"s_add_u32 {sCol}, {sCol}, {sT[2]}")
    a(f"s_lshl_b32 {sRS}, {sRS}, 6")
    a(f"s_lshl_b32 {sM0x}, {sW}, 12")
    a(f"s_mul_i32 {sM0w}, {sW}, 6144")
    a(f"s_add_u32 {sM0w}, {sM0w}, {WPART}")
    a(f"s_mov_b32 {sSlotB}, 0")
    a("s_waitcnt lgkmcnt(0)")
    srdX, srdW = srdA, srdB
    srd(srdX, sX, 2048 * 1024)
    a(f"s_cmp_eq_u32 {sTy}, 0")
    a(f"s_cselect_b32 {srdW[0]}, {sWQKV[0]}, {sW1[0]}")
    a(f"s_cselect_b32 {srdW[1]}, {sWQKV[1]}, {sW1[1]}")
    a(f"s_lshl_b32 {srdW[2]}, {sRS}, 3")
    a(f"s_mov_b32 {srdW[3]}, 0x20000")
    LDF = opt.get("ldflags", "")

    def chunk_ops(tag):
        g = []
        pre = [f"s_lshl_b32 {sSx}, {sKc}, 7", f"s_add_u32 {sSx}, {sSx}, {sRow}",
               f"s_mul_i32 {sSw}, {sKc}, {sRS}", f"s_add_u32 {sSw}, {sSw}, {sCol}",
               f"s_add_u32 {sKc}, {sKc}, 1", f"s_and_b32 {sKc}, {sKc}, 7",
               f"s_add_u32 m0, {sM0x}, {sSlotB}"]
        for i in range(4):
            x = pre if i == 0 else ["s_addk_i32 m0, 0x400"]
            if i == 2:
                x = x + [f"s_add_u32 {sSx}, {sSx}, 16384"]
            g.append(x + [f"buffer_load_dwordx4 {vx[i & 1]}, {srdX}, {sSx} offen {LDF} lds"])
        for i in range(6):
            x = [f"s_add_u32 m0, {sM0w}, {sSlotB}"] if i == 0 else ["s_addk_i32 m0, 0x400"]
            g.append(x + [f"buffer_load_dwordx4 {vw[i]}, {srdW}, {sSw} offen {LDF} lds"])
        g[-1] += [f"s_add_u32 {sSlotB}, {sSlotB}, {SLOT}", f"s_cmp_eq_u32 {sSlotB}, {3 * SLOT}",
                  f"s_cselect_b32 {sSlotB}, 0, {sSlotB}"]
        return g

    def emit_groups(groups, fill, tag, first_wait=None):
        fill = list(fill)
        per = (len(fill) + max(1, len(groups) - 2) - 1) // max(1, len(groups) - 2)
        for gi, g in enumerate(groups):
            for x in g:
                a(x)
            vm.issue(tag)
            if gi == 1 and first_wait:
                a(first_wait)
            if gi >= 1:
                for _ in range(per):
                    if fill:
                        a(fill.pop(0))
        for x in fill:
            a(x)

    emit_groups(chunk_ops(0), [], "c0")
    emit_groups(chunk_ops(1), [], "c1")
    stamp(1)
    srd(srdWS, sWS, WS_USED)
    srd(srdC, sW2, 1376 * 1024)
    srd(srdD, sDBG, 256)
    a(f"v_mov_b64 {sum_[0:2]}, 0")
    a(f"v_mov_b64 {sum_[2:4]}, 0")
    a(f"v_mov_b64 {sq_[0:2]}, 0")
    a(f"v_mov_b64 {sq_[2:4]}, 0")
    a(f"v_mov_b32 {vOnesB}, 0x3f803f80")
    vL16 = V()
    a(f"v_lshlrev_b32 {vL16}, 4, {vLane}")
    a(f"v_add_u32 {vSa}, {sM0x}, {vL16}")
    vW2 = V()
    a(f"v_and_b32 {vT[2]}, 2, {vT[0]}")
    a(f"v_lshlrev_b32 {vT[2]}, 1, {vT[2]}")
    a(f"v_xor_b32 {vT[2]}, {vT[2]}, {vT[1]}")
    a(f"v_lshlrev_b32 {vT[2]}, 4, {vT[2]}")
    a(f"v_lshl_add_u32 {vW2}, {vT[0]}, 10, {vT[2]}")
    vWr = [[V(), V()], [V(), V()]]
    sQ = S()
    a(f"s_mul_i32 {sQ}, {sW}, {QUART}")
    a(f"v_bfe_u32 {vT[2]}, {vLane}, 2, 2")
    a(f"v_lshrrev_b32 {vT[3]}, 5, {vLane}")
    a(f"v_lshl_add_u32 {vT[2]}, {vT[3]}, 3, {vT[2]}")
    a(f"v_lshlrev_b32 {vT[2]}, 7, {vT[2]}")
    a(f"v_bfe_u32 {vT[3]}, {vLane}, 4, 1")
    a(f"v_lshl_add_u32 {vT[2]}, {vT[3]}, 5, {vT[2]}")
    a(f"v_bfe_u32 {vT[3]}, {vLane}, 3, 1")
    a(f"v_lshl_add_u32 {vT[2]}, {vT[3]}, 6, {vT[2]}")
    a(f"v_and_b32 {vT[3]}, 3, {vLane}")
    a(f"v_lshl_add_u32 {vT[2]}, {vT[3]}, 3, {vT[2]}")
    a(f"v_add_u32 {vWr[0][0]}, {sQ}, {vT[2]}")
    a(f"v_xor_b32 {vWr[0][1]}, 64, {vWr[0][0]}")
    a(f"v_add_u32 {vWr[1][0]}, {2 * SLOT}, {vWr[0][0]}")
    a(f"v_add_u32 {vWr[1][1]}, {2 * SLOT}, {vWr[0][1]}")
    acc2 = [V(16) for _ in range(4)]
    for t in acc2:
        for i in range(0, 16, 2):
            a(f"v_mov_b64 {t[i:i + 2]}, 0")
    sRt, sCt, sWoff, sAoff = S(), S(), S(), S()
    a(f"s_lshr_b32 {sRt}, {sJ}, 3")
    a(f"s_lshl_b32 {sT[2]}, {sXcd}, 2")
    a(f"s_add_u32 {sRt}, {sRt}, {sT[2]}")
    a(f"s_and_b32 {sCt}, {sJ}, 7")
    a(f"s_lshl_b32 {sCt}, {sCt}, 7")
    a(f"s_mul_i32 {sWoff}, {sW}, {22 * 16384}")
    a(f"s_add_u32 {sWoff}, {sWoff}, {sCt}")

    stat_reads = [f"ds_read_b128 {xs[i]}, {vSa} offset:{1024 * i}" for i in range(4)]
    dots = []
    for k in range(4):
        for i in range(4):
            dots.append(f"v_dot2c_f32_bf16 {sum_[i]}, {xs[i][k]}, {vOnesB}")
        for i in range(4):
            dots.append(f"v_dot2c_f32_bf16 {sq_[i]}, {xs[i][k]}, {xs[i][k]}")
    sSl2 = sT[3]

    def adv_stat():
        a(f"s_add_u32 {sSl2}, {sSl2}, 1")
        a(f"s_cmp_eq_u32 {sSl2}, 3")
        a(f"s_cselect_b32 {sSl2}, 0, {sSl2}")
        a(f"s_cselect_b32 {sT[2]}, {(-2 * SLOT) & 0xffffffff}, {sT[4]}")
        a(f"v_add_u32 {vSa}, {sT[2]}, {vSa}")

    a(f"s_mov_b32 {sSl2}, 0")
    a(f"s_mov_b32 {sT[4]}, {SLOT}")
    a(f"s_mov_b32 {sCnt}, 0")
    a.label("L_Bloop")
    a("s_waitcnt vmcnt(10)")
    a("s_barrier")
    for r in stat_reads:
        a(r)
    adv_stat()
    if opt.get("x_nodma"):
        a("s_waitcnt lgkmcnt(0)")
        for d_ in ([] if opt.get("x_nodot") else dots): a(d_)
    else:
        emit_groups(chunk_ops(2), [] if opt.get("x_nodot") else dots, "cl", "s_waitcnt lgkmcnt(0)")
    a(f"s_add_u32 {sCnt}, {sCnt}, 1")
    a(f"s_cmp_lt_u32 {sCnt}, 6")
    a("s_cbranch_scc1 L_Bloop")
    vm.issued = ["c6"] * 10 + ["c7"] * 10
    vm.done = 0

    cellslot = [3] * 4 + [2] * 5 + [0] * 5 + [1] * 5
    cellidx = list(range(4)) + list(range(5)) * 3

    def cell_off(s):
        c = s % 19
        return cellslot[c] * SLOT + cellidx[c] * 2048

    def w2_groups(s):
        pre = []
        if s == 22:
            pre = [f"s_mov_b32 {srdC[0]}, {sWO[0]}", f"s_mov_b32 {srdC[1]}, {sWO[1]}", f"s_mov_b32 {srdC[2]}, {512 * 1024}",
                   f"s_lshl_b32 {sWoff}, {sW}, 17", f"s_add_u32 {sWoff}, {sWoff}, {sCt}"]
        ld = f"buffer_load_dwordx4 {vW2}, {srdC}, {sWoff} offen {LDF} lds"
        adv = f"s_add_u32 {sWoff}, {sWoff}, 8192"
        return [pre + [f"s_add_u32 m0, {sQ}, {cell_off(s)}", ld, adv], ["s_addk_i32 m0, 0x400", ld, adv]]

    vm.wait("c6")
    a("s_barrier")
    for r in stat_reads:
        a(r)
    adv_stat()
    a(f"v_mov_b32 {vT[2]}, 0")
    a(f"buffer_load_dwordx2 {vtag}, {vT[2]}, {srdD}, 0 offen sc1")
    vm.issue("tag")
    emit_groups(sum((w2_groups(s) for s in range(0, 4)), []), dots, "p0", "s_waitcnt lgkmcnt(0)")
    vm.wait("tag")
    a("s_barrier")
    stamp(2)
    for r in stat_reads:
        a(r)
    a(f"v_cmp_ne_u64 vcc, 0, {vtag}")
    a("s_cmp_eq_u64 vcc, exec")
    a("s_cbranch_scc1 L_tagok")
    poll(vT[2], 0, vtag, srdD, nonzero=True)
    a.label("L_tagok")
    a(f"v_readfirstlane_b32 {sTag[0]}, {vtag[0]}")
    a(f"v_readfirstlane_b32 {sTag[1]}, {vtag[1]}")
    fin = list(dots)
    fin += ["s_nop 2"]
    for mode in ("quad_perm:[1,0,3,2]", "quad_perm:[2,3,0,1]", "row_half_mirror"):
        for t in (sum_, sq_):
            for i in range(4):
                fin.append(f"v_add_f32_dpp {t[i]}, {t[i]}, {t[i]} {mode} row_mask:0xf bank_mask:0xf")
    m_, q_ = xs[0][0], xs[0][1]
    st = xs[1]
    fin += [f"v_and_b32 {vT[3]}, 3, {vLane}",
            f"v_mov_b32 {m_}, {sum_[0]}", f"v_mov_b32 {q_}, {sq_[0]}"]
    for i in range(1, 4):
        fin += [f"v_cmp_eq_u32 vcc, {i}, {vT[3]}",
                f"s_nop 1",
                f"v_cndmask_b32 {m_}, {m_}, {sum_[i]}, vcc", f"v_cndmask_b32 {q_}, {q_}, {sq_[i]}, vcc"]
    fin += [f"v_mul_f32 {m_}, 0x3b000000, {m_}",
            f"v_mul_f32 {q_}, 0x3b000000, {q_}",
            f"v_fma_f32 {q_}, -{m_}, {m_}, {q_}",
            f"v_max_f32 {q_}, 0, {q_}",
            f"v_cvt_pk_bf16_f32 {m_}, {q_}, {m_}",
            f"v_lshlrev_b32 {q_}, 16, {m_}",
            f"v_and_b32 {m_}, 0xffff0000, {m_}",
            f"v_add_f32 {q_}, 0x3727c5ac, {q_}",
            f"v_cvt_pk_bf16_f32 {q_}, {q_}, {q_}",
            f"v_and_b32 {q_}, 0xffff0000, {q_}",
            f"v_sqrt_f32 {q_}, {q_}",
            f"v_xor_b32 {st[0]}, 0x80000000, {m_}",
            f"v_cvt_pk_bf16_f32 {q_}, {q_}, {q_}",
            f"v_and_b32 {q_}, 0xffff0000, {q_}",
            f"v_rcp_f32 {st[1]}, {q_}",
            f"v_lshl_add_u32 {vT[3]}, {vT[3]}, 3, {vT[0]}",
            f"s_lshl_b32 {sT[2]}, {sW}, 5",
            f"v_add_u32 {vT[3]}, {sT[2]}, {vT[3]}",
            f"v_lshlrev_b32 {vT[4]}, 3, {vT[3]}",
            f"v_lshlrev_b32 {vT[3]}, 2, {vT[3]}",
            f"v_add_u32 {vT[4]}, {STAT2}, {vT[4]}",
            f"v_add_u32 {vT[3]}, {NMEAN}, {vT[3]}",
            f"v_mov_b32 {vT[5]}, {TAGL}",
            f"ds_write_b64 {vT[4]}, {st[0:2]}",
            f"ds_write2_b32 {vT[3]}, {st[0]}, {st[1]} offset1:128",
            f"ds_write_b64 {vT[5]}, {vtag}"]
    emit_groups(sum((w2_groups(s) for s in range(4, 9)), []), fin, "p1", "s_waitcnt lgkmcnt(0)")
    a("s_waitcnt lgkmcnt(0)")
    a("s_barrier")
    stamp(3)
    emit_groups(sum((w2_groups(s) for s in range(9, 19)), []), [], "p2")
    xres = [V(4), V(4)]
    b2r = V(4)
    vOut = V()
    srd(srdB, sB2, 1024)
    a(f"v_lshlrev_b32 {vT[2]}, 4, {vT[1]}")
    a(f"v_lshl_add_u32 {vOut}, {vT[0]}, 10, {vT[2]}")
    sOo = S()
    a(f"s_lshl_b32 {sOo}, {sRt}, 2")
    a(f"s_add_u32 {sOo}, {sOo}, {sW}")
    a(f"s_lshl_b32 {sOo}, {sOo}, 14")
    a(f"s_add_u32 {sOo}, {sOo}, {sCt}")
    a(f"s_add_u32 {sT[5]}, {sOo}, 8192")
    a(f"buffer_load_dwordx4 {xres[0]}, {vOut}, {srdX}, {sOo} offen")
    a(f"buffer_load_dwordx4 {xres[1]}, {vOut}, {srdX}, {sT[5]} offen")
    a(f"buffer_load_dwordx4 {b2r}, {vT[2]}, {srdB}, {sCt} offen")
    srd(srdD, sOUT, 2048 * 1024)
    stamp(4)
    sFl = S()
    vFl = V()
    a(f"s_lshr_b32 {sFl}, {sRt}, 1")
    a(f"s_lshl_b32 {sFl}, {sFl}, 3")
    a(f"s_add_u32 {sFl}, {sFl}, {sW}")
    a(f"s_lshl_b32 {sFl}, {sFl}, 6")
    a(f"s_add_u32 {sFl}, {sFl}, {FLA_OFF}")
    a(f"v_lshlrev_b32 {vFl}, 3, {vT[1]}")
    a(f"s_mul_i32 {sAoff}, {sRt}, {NKS}")
    a(f"s_mul_i32 {sT[2]}, {sW}, 22")
    a(f"s_add_u32 {sAoff}, {sAoff}, {sT[2]}")
    a(f"s_lshl_b32 {sAoff}, {sAoff}, 11")
    poll(vFl, sFl, vtag, srdWS, imm=256)
    vm.issued, vm.done = [], 0
    stamp(5)
    af = [[V(4), V(4)] for _ in range(DA)]
    w2f = [[V(4), V(4)] for _ in range(2)]

    def a_load(s):
        if s >= 30:
            return
        if s == 20:
            a(f"s_cmp_eq_u32 {sW}, 3")
            a(f"s_cselect_b32 {sAoff}, {OOB}, {sAoff}")
        if s == 22:
            stamp(6)
            poll(vFl, sFl, vtag, srdWS, imm=0)
            stamp(7)
            vm.done = len(vm.issued)
            a(f"s_mul_i32 {sAoff}, {sRt}, {NKS}")
            a(f"s_lshl_b32 {sT[2]}, {sW}, 3")
            a(f"s_add_u32 {sAoff}, {sAoff}, {sT[2]}")
            a(f"s_add_u32 {sAoff}, {sAoff}, 86")
            a(f"s_lshl_b32 {sAoff}, {sAoff}, 11")
        for mt in range(2):
            a(f"buffer_load_dwordx4 {af[s % DA][mt]}, {vL16}, {srdWS}, {sAoff} offen offset:{1024 * mt} sc1")
            vm.issue(f"a{s}")
        a(f"s_add_u32 {sAoff}, {sAoff}, 2048")

    def w_reads(s):
        off = cell_off(s)
        hi = off >= 2 * SLOT
        off -= 2 * SLOT * hi
        return [f"ds_read_b64_tr_b16 {w2f[s & 1][nt][2 * hf:2 * hf + 2]}, {vWr[hi][nt]} offset:{off + 512 * hf}"
                for nt in range(2) for hf in range(2)]

    for s in range(DA):
        a_load(s)
    for r in w_reads(0):
        a(r)
    for s in range(30):
        vm.wait(f"a{s}", "lgkmcnt(0)")
        if s + 1 >= 19 and s + 1 < 30:
            vm.wait(f"w{s + 1}")
        mf = [f"v_mfma_f32_32x32x16_bf16 {acc2[nt + 2 * mt]}, {w2f[s & 1][nt]}, {af[s % DA][mt]}, {acc2[nt + 2 * mt]}"
              for mt in range(2) for nt in range(2)]
        interleave(mf, w_reads(s + 1) if s + 1 < 30 else [])
        a_load(s + DA)
        if s + 19 < 30:
            for g in w2_groups(s + 19):
                for x in g:
                    a(x)
                vm.issue(f"w{s + 19}")
    stamp(8)
    a(f"v_and_b32 {vT[2]}, 31, {vLane}")
    a(f"v_bfe_u32 {vT[3]}, {vLane}, 1, 2")
    a(f"v_and_b32 {vT[4]}, 1, {vLane}")
    a(f"v_lshl_or_b32 {vT[3]}, {vT[4]}, 2, {vT[3]}")
    a(f"v_lshrrev_b32 {vT[4]}, 5, {vLane}")
    a(f"v_xor_b32 {vT[3]}, {vT[3]}, {vT[4]}")
    a(f"v_lshlrev_b32 {vT[3]}, 4, {vT[3]}")
    a(f"v_lshl_add_u32 {vT[2]}, {vT[2]}, 7, {vT[3]}")
    wa = [[V() for g in range(4)] for hi in range(2)]
    a(f"v_add_u32 {wa[0][0]}, {sQ}, {vT[2]}")
    for g in range(1, 4):
        a(f"v_xor_b32 {wa[0][g]}, {32 * g}, {wa[0][0]}")
    for g in range(4):
        a(f"v_add_u32 {wa[1][g]}, {2 * SLOT}, {wa[0][g]}")
    for i in range(4):
        for g in range(4):
            a(f"ds_write_b128 {wa[i >> 1][g]}, {acc2[i][4 * g:4 * g + 4]} offset:{(i & 1) * SLOT}")
    a(f"s_lshr_b32 {sT[2]}, {sW}, 1")
    a(f"s_mul_i32 {sT[2]}, {sT[2]}, {2 * SLOT}")
    a(f"s_and_b32 {sT[3]}, {sW}, 1")
    a(f"s_lshl_b32 {sT[3]}, {sT[3]}, 11")
    a(f"s_add_u32 {sT[2]}, {sT[2]}, {sT[3]}")
    a(f"v_bfe_u32 {vT[2]}, {vLane}, 2, 1")
    a(f"v_mul_u32_u24 {vT[2]}, {SLOT}, {vT[2]}")
    a(f"v_lshl_add_u32 {vT[2]}, {vT[0]}, 7, {vT[2]}")
    a(f"v_bfe_u32 {vT[3]}, {vLane}, 4, 2")
    a(f"v_bfe_u32 {vT[4]}, {vLane}, 3, 1")
    a(f"v_lshl_or_b32 {vT[3]}, {vT[4]}, 2, {vT[3]}")
    a(f"v_and_b32 {vT[4]}, 3, {vLane}")
    a(f"v_lshlrev_b32 {vT[4]}, 1, {vT[4]}")
    a(f"v_xor_b32 {vT[3]}, {vT[3]}, {vT[4]}")
    a(f"v_lshl_add_u32 {vT[2]}, {vT[3]}, 4, {vT[2]}")
    a(f"v_add_u32 {vT[2]}, {sT[2]}, {vT[2]}")
    a(f"v_xor_b32 {vT[3]}, 16, {vT[2]}")
    ad = [V(8), V(8)]
    bb = V(8)
    for i in range(4):
        a(f"v_lshlrev_b32 {bb[2 * i]}, 16, {b2r[i]}")
        a(f"v_and_b32 {bb[2 * i + 1]}, 0xffff0000, {b2r[i]}")
    for ps in range(2):
        for i in range(4):
            a(f"v_lshlrev_b32 {ad[ps][2 * i]}, 16, {xres[ps][i]}")
            a(f"v_and_b32 {ad[ps][2 * i + 1]}, 0xffff0000, {xres[ps][i]}")
        for i in range(0, 8, 2):
            a(f"v_pk_add_f32 {ad[ps][i:i + 2]}, {ad[ps][i:i + 2]}, {bb[i:i + 2]}")
    a("s_waitcnt lgkmcnt(0)")
    a("s_barrier")
    for ps in range(2):
        for src in range(4):
            for k in range(2):
                a(f"ds_read_b128 {acc2[src][8 * ps + 4 * k:8 * ps + 4 * k + 4]}, {vT[2 + k]} offset:{src * QUART + ps * 1024}")
    for ps in range(2):
        for src in range(4):
            a(f"s_waitcnt lgkmcnt({14 - 8 * ps - 2 * src})")
            for i in range(0, 8, 2):
                a(f"v_pk_add_f32 {ad[ps][i:i + 2]}, {ad[ps][i:i + 2]}, {acc2[src][8 * ps + i:8 * ps + i + 2]}")
        for i in range(4):
            a(f"v_cvt_pk_bf16_f32 {xres[ps][i]}, {ad[ps][2 * i]}, {ad[ps][2 * i + 1]}")
        a(f"buffer_store_dwordx4 {xres[ps]}, {vOut}, {srdD}, {sOo if ps == 0 else sT[5]} offen {opt.get('outflags', '')}")
    stamp(9)
    if "bwprobe" in opt:
        n, fl = opt["bwprobe"]
        srd(srdB, sWS, 268435456)
        a(f"s_lshl_b32 {sT[0]}, s2, 2")
        a(f"s_add_u32 {sT[0]}, {sT[0]}, {sW}")
        a(f"s_mul_i32 {sT[0]}, {sT[0]}, {n * 1024}")
        a(f"s_add_u32 {sT[0]}, {sT[0]}, 0x1000000")
        a(f"s_mov_b32 {sCnt}, 0")
        a.label("L_probe")
        for i in range(8):
            a("s_waitcnt vmcnt(7)")
            a(f"buffer_load_dwordx4 {acc2[i >> 2][4 * (i & 3):4 * (i & 3) + 4]}, {vL16}, {srdB}, {sT[0]} offen {fl}")
            a(f"s_add_u32 {sT[0]}, {sT[0]}, 1024")
        a(f"s_add_u32 {sCnt}, {sCnt}, 8")
        a(f"s_cmp_lt_u32 {sCnt}, {n}")
        a("s_cbranch_scc1 L_probe")
        a("s_waitcnt vmcnt(0)")
    if "probe" in opt:
        ptr, size, base, stride, n = opt["probe"]
        a(f"s_or_b32 {sT[0]}, s2, {sW}")
        a(f"s_cmp_lg_u32 {sT[0]}, 0")
        a("s_cbranch_scc1 L_end")
        srd(srdB, R("s", ptr, 2), size)
        a(f"v_mov_b32 {vT[0]}, {base}")
        a(f"s_mov_b32 {sCnt}, 0")
        a.label("L_probe")
        a(f"buffer_load_dword {vT[1]}, {vT[0]}, {srdB}, 0 offen")
        a("s_waitcnt vmcnt(0)")
        a(f"v_add_u32 {vT[0]}, {stride}, {vT[0]}")
        a(f"s_add_u32 {sCnt}, {sCnt}, 1")
        a(f"s_cmp_lt_u32 {sCnt}, {n}")
        a("s_cbranch_scc1 L_probe")
    if "amp" in opt:
        k = opt["amp"]
        a("s_waitcnt lgkmcnt(0)")
        a(f"s_sub_u32 {sT[0]}, {sStamp[k][0]}, {sStamp[opt.get('amp0', 0)][0]}")
        a(f"s_mul_i32 {sT[0]}, {sT[0]}, 10")
        a(f"s_min_u32 {sT[0]}, {sT[0]}, 100000")
        a.label("L_amp")
        a(f"s_memrealtime {sStamp[1]}")
        a("s_waitcnt lgkmcnt(0)")
        a(f"s_sub_u32 {sT[1]}, {sStamp[1][0]}, {sStamp[9][0]}")
        a(f"s_cmp_lt_u32 {sT[1]}, {sT[0]}")
        a("s_cbranch_scc1 L_amp")
    else:
        write_stamps(vT)
    a.label("L_end")
    a("s_endpgm")
    body = a.finish(verbose=opt.get("verbose", False))
    if opt.get("verbose"):
        print("vgpr A", highA, "B", V.high, "sgpr", S.high)

    ref = open(os.path.join(os.path.dirname(os.path.abspath(__file__)), "header.txt")).read()
    txt = ref + f"; @launch grid=(256,1,1) block=(512,1,1) lds={LDS_BYTES}\n"
    txt += f""".amdgcn_target "amdgcn-amd-amdhsa--gfx950"
.text
.globl {KERN}
.p2align 8
.type {KERN},@function
{KERN}:
{body}.section .rodata,"a"
.p2align 6
.amdhsa_kernel {KERN}
  .amdhsa_next_free_vgpr 256
  .amdhsa_next_free_sgpr 102
  .amdhsa_accum_offset 256
  .amdhsa_group_segment_fixed_size 0
  .amdhsa_kernarg_size 88
  .amdhsa_user_sgpr_count 2
  .amdhsa_user_sgpr_kernarg_segment_ptr 1
  .amdhsa_system_sgpr_workgroup_id_x 1
  .amdhsa_float_denorm_mode_32 3
.end_amdhsa_kernel
"""
    return txt


if __name__ == "__main__":
    import json
    opt = json.loads(sys.argv[2]) if len(sys.argv) > 2 else {}
    opt.setdefault("verbose", True)
    out = sys.argv[1] if len(sys.argv) > 1 else f"cdna_kernels/{NAME}.s"
    open(out, "w").write(gen(opt))
```
